```python
import torch

def _softmax(x, axis=-1):
    return torch.softmax(x, dim=axis)

def _gelu(x):
    return torch.nn.functional.gelu(x, approximate='tanh')

def _silu(x):
    return torch.nn.functional.silu(x)

def _sigmoid(x):
    return torch.sigmoid(x)

def _layernorm(x, axis=-1, eps=1e-05):
    m = x.mean(dim=axis, keepdim=True)
    v = x.var(dim=axis, keepdim=True, unbiased=False)
    return (x - m) / torch.sqrt(v + eps)

def _scatter_add(tgt, idx, src, axis=0):
    return tgt.clone().index_add_(axis, idx, src)

def _segment_sum(src, seg, n):
    out = torch.zeros((n,) + src.shape[1:], dtype=src.dtype)
    return out.index_add_(0, seg, src)

def _pad(x, pw):
    flat = tuple((v for pair in reversed(pw) for v in pair))
    return torch.nn.functional.pad(x, flat)
kernel_name = 'parallel_sum__memory_aug_recurrent_mem_tr__geglu_ffn__prompt'

def setup_inputs():

    _w = lambda a: (lambda t: t.to(torch.bfloat16) if t.is_floating_point() else t)(torch.as_tensor(a))

    def _A_setup():
        B, S, Dm = (1, 2048, 512)
        H, Dh = (32, 128)
        M, seg = (8, 32)
        seg = min(seg, S)
        S = S // seg * seg
        return {'x': _w((lambda *s: torch.randn(*s, dtype=torch.bfloat16) * 0.05)(B, S, Dm)), 'mem0': _w((lambda *s: torch.randn(*s, dtype=torch.bfloat16) * 1.6)(B, M, Dm)), 'Wq': _w((lambda *s: torch.randn(*s, dtype=torch.bfloat16) * 0.8)(Dm, H, Dh) * Dm ** (-0.5)), 'Wk': _w((lambda *s: torch.randn(*s, dtype=torch.bfloat16) * 0.8)(Dm, H, Dh) * Dm ** (-0.5)), 'Wv': _w((lambda *s: torch.randn(*s, dtype=torch.bfloat16) * 1.6)(Dm, H, Dh) * Dm ** (-0.5)), 'Wo': _w((lambda *s: torch.randn(*s, dtype=torch.bfloat16) * 1.6)(H, Dh, Dm) * (H * Dh) ** (-0.5)), 'seg_len': seg}
    _A_in = _A_setup()

    def _B_setup():
        B, S, D, F = (1, 2048, 512, 1376)
        return {'x': _w((lambda *s: torch.randn(*s, dtype=torch.bfloat16) * 0.05)(B, S, D)), 'w_gate': _w((lambda *s: torch.randn(*s, dtype=torch.bfloat16) * 0.05)(D, F)), 'w_up': _w((lambda *s: torch.randn(*s, dtype=torch.bfloat16) * 0.05)(D, F)), 'w_down': _w((lambda *s: torch.randn(*s, dtype=torch.bfloat16) * 0.05)(F, D))}
    _B_in = _B_setup()
    return {'A_x': _A_in['x'], 'A_mem0': _A_in['mem0'], 'A_Wq': _A_in['Wq'], 'A_Wk': _A_in['Wk'], 'A_Wv': _A_in['Wv'], 'A_Wo': _A_in['Wo'], 'A_seg_len': _A_in['seg_len'], 'B_x': _B_in['x'], 'B_w_gate': _B_in['w_gate'], 'B_w_up': _B_in['w_up'], 'B_w_down': _B_in['w_down']}

def reference(A_x, A_mem0, A_Wq, A_Wk, A_Wv, A_Wo, A_seg_len, B_x, B_w_gate, B_w_up, B_w_down):

    def _A_ref(x, mem0, Wq, Wk, Wv, Wo, seg_len):
        B, S, Dm = x.shape
        H, Dh = (Wq.shape[1], Wq.shape[2])
        M = mem0.shape[1]
        scale = Dh ** (-0.5)
        n_seg = S // seg_len
        L = M + seg_len
        idx = torch.arange(L)
        mask = (idx[:, None] < M) | (idx[:, None] >= idx[None, :])
        mem = mem0
        outs = []
        for s in range(n_seg):
            xs = x[:, s * seg_len:(s + 1) * seg_len, :].clone()
            h = torch.concatenate([mem, xs], axis=1)
            q = torch.einsum('btd,dhe->bhte', h, Wq)
            k = torch.einsum('btd,dhe->bhte', h, Wk)
            v = torch.einsum('btd,dhe->bhte', h, Wv)
            scores = torch.einsum('bhqe,bhke->bhqk', q, k) * scale
            scores = torch.where(mask[None, None], scores, -1000000000.0)
            p = _softmax(scores, axis=-1)
            o = torch.einsum('bhqk,bhke->bhqe', p, v)
            o = torch.einsum('bhte,hed->btd', o, Wo)
            mem = o[:, :M, :].clone()
            outs.append(o[:, M:, :])
        return torch.concatenate(outs, axis=1)

    def _B_ref(x, w_gate, w_up, w_down):
        return _gelu(x @ w_gate) * (x @ w_up) @ w_down
    x = A_x
    xn = _layernorm(x, axis=-1)
    return x + _A_ref(xn, A_mem0, A_Wq, A_Wk, A_Wv, A_Wo, A_seg_len) + _B_ref(xn, B_w_gate, B_w_up, B_w_down)
```

```python
import re

_REG = re.compile(r'^(-?)(?:abs\()?([vas])(?:(\d+)|\[(\d+):(\d+)\])\)?$')

def regs_of(tok):
    tok = tok.strip()
    if tok in ('vcc', 'vcc_lo', 'vcc_hi'): return {('x', 'vcc')}
    if tok in ('exec', 'exec_lo', 'exec_hi'): return {('x', 'exec')}
    if tok == 'm0': return {('x', 'm0')}
    tok = tok.replace('|', '')
    m = _REG.match(tok)
    if not m: return set()
    k = m.group(2)
    if m.group(3) is not None: return {(k, int(m.group(3)))}
    return {(k, i) for i in range(int(m.group(4)), int(m.group(5)) + 1)}

TRANS = ('v_exp_f32', 'v_log_f32', 'v_rcp_f32', 'v_rsq_f32', 'v_sqrt_f32', 'v_sin_f32', 'v_cos_f32', 'v_rcp_iflag_f32')

class Ins:
    __slots__ = ('text', 'op', 'kind', 'w', 'r', 'passes', 'dpp', 'srcC', 'ab', 'states', 'wide_store', 'lds_dma', 'mods')
    def __init__(self, text):
        self.text = text
        t = text.split(';')[0].strip()
        parts = t.split(None, 1)
        op = parts[0]
        self.op = op
        rest = parts[1] if len(parts) > 1 else ''
        ops = []
        cur = ''
        depth = 0
        for ch in rest:
            if ch in '[(': depth += 1
            if ch in '])': depth -= 1
            if ch == ',' and depth == 0:
                ops.append(cur.strip()); cur = ''
            else:
                cur += ch
        if cur.strip(): ops.append(cur.strip())
        mods = ''
        if ops:
            l = ops[-1].split(None, 1)
            ops[-1] = l[0]
            if len(l) > 1: mods = l[1]
        self.mods = mods
        self.w = set(); self.r = set(); self.passes = 0; self.dpp = False
        self.srcC = set(); self.ab = set(); self.states = 1
        self.wide_store = set(); self.lds_dma = False
        R = [regs_of(o) for o in ops]
        if op == 's_nop':
            self.kind = 'nop'; self.states = int(ops[0], 0) + 1
        elif op.startswith('v_mfma') or op.startswith('v_smfmac'):
            self.kind = 'mfma'
            self.passes = 8 if '32x32' in op else 4
            self.w = R[0]
            self.ab = R[1] | R[2]
            if op.startswith('v_smfmac'):
                self.srcC = R[0]; self.ab |= R[3]
            else:
                self.srcC = R[3]
            self.r = self.ab | self.srcC
        elif op.startswith('v_'):
            self.kind = 'valu'
            base = op.replace('_e32', '').replace('_e64', '').replace('_dpp', '')
            if base in TRANS: self.kind = 'trans'
            if 'quad_perm' in mods or 'row_' in mods or op.endswith('_dpp'): self.dpp = True
            if op.startswith('v_permlane'):
                self.kind = 'permlane'; self.w = R[0] | R[1]; self.r = R[0] | R[1]
            elif op.startswith('v_cmp'):
                self.w = R[0]
                for x in R[1:]: self.r |= x
            elif op.startswith('v_readfirstlane') or op.startswith('v_readlane'):
                self.kind = 'readlane'; self.w = R[0]
                for x in R[1:]: self.r |= x
            else:
                self.w = R[0]
                for x in R[1:]: self.r |= x
                if base.startswith('v_fmac') or base.startswith('v_dot2c') or self.dpp or base.startswith('v_writelane'):
                    self.r |= R[0]
                if base.startswith('v_add_co') or base.startswith('v_sub_co') or base.startswith('v_addc_co'):
                    self.w |= R[1]
        elif op.startswith('ds_'):
            self.kind = 'ds'
            if op.startswith('ds_read') or 'permute' in op or 'swizzle' in op or '_rtn' in op:
                self.w = R[0]
                for x in R[1:]: self.r |= x
            else:
                for x in R: self.r |= x
        elif op.startswith('buffer_') or op.startswith('global_'):
            self.kind = 'vmem'
            if ' lds' in (' ' + mods) and op.startswith('buffer_load'):
                self.lds_dma = True
                for x in R: self.r |= x
                self.r |= {('x', 'm0')}
            elif 'load' in op:
                self.w = R[0]
                for x in R[1:]: self.r |= x
            elif 'atomic' in op:
                for x in R: self.r |= x
                if 'sc0' in mods: self.w = R[0]
            elif op in ('buffer_wbl2', 'buffer_inv'):
                pass
            else:
                for x in R: self.r |= x
                if 'x4' in op or 'x3' in op: self.wide_store = R[0] if op.startswith('buffer') else R[1]
        elif op.startswith('s_'):
            self.kind = 'salu'
            if op.startswith('s_cmp') or op.startswith('s_cbranch') or op in ('s_branch', 's_barrier', 's_waitcnt', 's_endpgm', 's_sleep', 's_setprio', 's_bitcmp0_b32', 's_bitcmp1_b32', 's_bitcmp1_b64'):
                for x in R: self.r |= x
            else:
                if R: self.w = R[0]
                for x in R[1:]: self.r |= x
                if 'saveexec' in op: self.w |= {('x', 'exec')}
        else:
            raise ValueError('unknown instruction: ' + text)

VALUK = ('valu', 'trans', 'permlane', 'readlane')

def need(p, c):
    n = 0
    pv = p.kind in VALUK
    cv = c.kind in VALUK
    vw = {x for x in p.w if x[0] in 'va'}
    sw = {x for x in p.w if x[0] == 's' or x == ('x', 'vcc')}
    if pv:
        if c.kind == 'mfma' and vw & c.r: n = max(n, 2)
        if cv and c.dpp and vw & c.r: n = max(n, 2)
        if c.kind == 'permlane' and vw & c.r: n = max(n, 2)
        if c.kind == 'readlane' and vw & c.r: n = max(n, 1)
        if p.kind == 'trans' and cv and vw & c.r: n = max(n, 1)
        if p.kind == 'trans' and c.kind in ('ds', 'vmem') and vw & c.r: n = max(n, 1)
        if sw & c.r:
            if cv: n = max(n, 4 if c.kind == 'readlane' else 2)
            if c.kind == 'vmem': n = max(n, 5)
            if c.kind == 'salu': n = max(n, 1)
        if 'op_sel' in p.mods and cv and vw & (c.r | c.w): n = max(n, 1)
    if p.kind == 'mfma':
        big = {4: 8, 8: 12}[p.passes]
        ovl = {4: 6, 8: 10}[p.passes]
        war = {4: 3, 8: 7}[p.passes]
        if c.kind == 'mfma':
            if p.w & c.ab: n = max(n, big)
            if p.w & c.srcC:
                if not (p.w == c.srcC and p.op == c.op): n = max(n, big)
            elif p.w & c.w: n = max(n, ovl)
        elif c.kind != 'nop':
            if p.w & (c.r | c.w): n = max(n, big)
            if cv and p.srcC & c.w: n = max(n, war)
    if p.kind == 'salu' and ('x', 'm0') in p.w and c.lds_dma: n = max(n, 1)
    if p.wide_store and p.wide_store & c.w: n = max(n, 2)
    return n

class Asm:
    def __init__(self):
        self.lines = []
        self.uid = 0
    def __call__(self, s):
        for l in s.split('\n'):
            l = l.strip()
            if l: self.lines.append(l)
    def label(self, name): self.lines.append(name + ':')
    def newlabel(self, base):
        self.uid += 1
        return f'L_{base}_{self.uid}'
    def raw(self, s): self.lines.append('\x00' + s)
    def finish(self):
        out = []
        hist = []
        inserted = 0
        for l in self.lines:
            if l.startswith('\x00'):
                out.append(l[1:]); continue
            if l.endswith(':') or l.startswith('.') or l.startswith(';'):
                out.append(l); continue
            ins = Ins(l)
            req = 0
            for p, tn, tm in hist:
                n = need(p, ins)
                if not n: continue
                at = max(tn, tm) if ins.kind == 'mfma' else tn
                if at < n + 1: req = max(req, n + 1 - tn)
            while req > 0:
                k = min(req, 16)
                out.append(f'    s_nop {k-1}')
                for h in hist: h[1] += k
                req -= k; inserted += 1
            out.append('    ' + l)
            for h in hist:
                if ins.kind == 'mfma':
                    at = max(h[1], h[2])
                    h[1] = at + 1; h[2] = at + ins.passes
                else:
                    h[1] += ins.states
            hist = [h for h in hist if h[1] < 15]
            hist.append([ins, 1, ins.passes if ins.kind == 'mfma' else 0])
            if ins.op in ('s_branch', 's_endpgm'): hist = []
        self.n_nops = inserted
        return '\n'.join(out) + '\n'

def v(i, n=1): return f'v{i}' if n == 1 else f'v[{i}:{i+n-1}]'
def a(i, n=1): return f'a{i}' if n == 1 else f'a[{i}:{i+n-1}]'
def s(i, n=1): return f's{i}' if n == 1 else f's[{i}:{i+n-1}]'
```

```python
from asmlib import *

def worker(A, G):
    g_ = G.__dict__
    (SX, SWS, SDBG, SWQ, SWK, SWV, SWO, SWG, SWU, SWD, SOUT) = [g_[k] for k in
        "SX SWS SDBG SWQ SWK SWV SWO SWG SWU SWD SOUT".split()]
    sT0, sT1, sT2, sT3, sBUD = G.sT0, G.sT1, G.sT2, G.sT3, G.sBUD
    W, H, X = s(G.sWAVE), s(G.sRANK), s(G.sXCC)
    ISTR, SENT = G.ISTR, G.SENT
    sREP, sSEG, sBUF, sRSB, sA, sB, sC, sD, sHM, sCS = 60, 61, 62, 63, 64, 65, 66, 67, 68, 70
    sRO = 72
    sE, sF = 80, 81
    vL16, vR16, vG, vL8 = 2, 3, 4, 5
    lg = lambda n: f"s_waitcnt lgkmcnt({n})"
    L_XT, L_OI = 98304, 0
    def mf(d, aop, bop, c): A(f"v_mfma_f32_16x16x32_bf16 {d}, {aop}, {bop}, {c}")
    def seg_loop(name, body):
        A(f"s_mov_b32 {s(sSEG)}, {s(sREP)}")
        A.label(name)
        body()
        A(f"s_add_u32 {s(sSEG)}, {s(sSEG)}, 7")
        A(f"s_cmp_lt_u32 {s(sSEG)}, 64")
        A(f"s_cbranch_scc1 {name}")

    A.label("L_worker")
    A(f"s_sub_u32 {s(sREP)}, {X}, 1")
    A(f"v_lshlrev_b32 {v(vL16)}, 4, v0")
    A(f"v_and_b32 {v(vR16)}, 15, v0")
    A(f"v_lshrrev_b32 {v(vG)}, 4, v0")
    A(f"v_lshlrev_b32 {v(vL8)}, 3, v0")
    A(f"v_and_b32 v18, 1, {v(vG)}")
    A("v_lshlrev_b32 v25, 3, v18")
    A(f"v_xor_b32 v25, v25, {v(vR16)}")
    A("v_lshlrev_b32 v25, 4, v25")
    A(f"v_lshl_add_u32 v25, {v(vG)}, 16, v25")
    A(f"s_lshl_b32 {s(sT0)}, {W}, 20")
    A(f"s_lshl_b32 {s(sT1)}, {H}, 8")
    A(f"s_add_u32 {s(sT0)}, {s(sT0)}, {s(sT1)}")
    A(f"v_add_u32 v6, {s(sT0)}, v25")
    A("v_bfe_u32 v25, v0, 2, 2")
    A(f"v_mul_u32_u24 v25, {ISTR}, v25")
    A(f"v_lshl_add_u32 v25, {v(vG)}, 8, v25")
    A("v_and_b32 v26, 3, v0")
    A("v_lshlrev_b32 v27, 7, v18")
    A(f"s_lshl_b32 {s(sT0)}, {W}, 6")
    A(f"v_xor_b32 v27, {s(sT0)}, v27")
    A("v_lshl_add_u32 v27, v26, 3, v27")
    A("v_add_u32 v7, v27, v25")
    A(f"v_lshlrev_b32 v27, 12, {v(vG)}")
    A(f"v_lshl_add_u32 v27, {v(vR16)}, 4, v27")
    A(f"s_lshl_b32 {s(sT0)}, {W}, 8")
    A(f"v_add_u32 v8, {s(sT0)}, v27")
    A("v_lshl_add_u32 v27, v26, 3, v25")
    A(f"s_lshl_b32 {s(sT0)}, {W}, 10")
    A(f"v_add_u32 v9, {s(sT0)}, v27")
    A("v_bfe_u32 v27, v0, 3, 1")
    A(f"v_lshl_add_u32 v27, {v(vG)}, 3, v27")
    A(f"s_lshl_b32 {s(sT0)}, {W}, 7")
    A(f"v_add_u32 v27, {s(sT0)}, v27")
    A("v_mul_u32_u24 v27, 2752, v27")
    A("v_and_b32 v28, 7, v0")
    A("v_lshl_add_u32 v27, v28, 4, v27")
    A(f"s_lshl_b32 {s(sT0)}, {H}, 7")
    A(f"v_add_u32 v10, {s(sT0)}, v27")
    A("v_bfe_u32 v27, v0, 3, 1")
    A(f"v_mul_u32_u24 v27, {ISTR}, v27")
    A(f"v_lshl_add_u32 v27, {v(vG)}, 8, v27")
    A("v_bfe_u32 v28, v0, 2, 1")
    A("v_lshl_add_u32 v27, v28, 7, v27")
    A("v_lshl_add_u32 v27, v26, 3, v27")
    A(f"s_lshl_b32 {s(sT0)}, {W}, 5")
    A(f"v_add_u32 v11, {s(sT0)}, v27")
    A(f"v_lshlrev_b32 v27, 10, {v(vG)}")
    A(f"v_lshl_add_u32 v27, {v(vR16)}, 4, v27")
    A(f"s_lshl_b32 {s(sT0)}, {W}, 8")
    A(f"v_add_u32 v12, {s(sT0)}, v27")
    A(f"s_lshl_b32 {s(sRSB)}, {s(sREP)}, 21")
    A(f"s_add_u32 {s(sRSB)}, {s(sRSB)}, {G.WS_RS}")

    def proj_chunks(srd, tile0):
        out = []
        for b in range(2):
            for hb in range(2):
                for q in range(2):
                    reads = []
                    for p in range(4):
                        for t in range(2):
                            dst = a(((tile0 + t) * 16 + 4*p + 2*b + hb) * 4 + 2*q, 2)
                            reads.append(lambda R, dst=dst, p=p, t=t: f"ds_read_b64_tr_b16 {dst}, v7 offset:{R + p*1024 + t*32}")
                    out.append(dict(srd=srd, voff=6, soff=[(64*b + 32*hb + 4*q + rr) * 8192 for rr in range(4)], reads=reads))
        return out

    def init_work(A):
        for i in range(4): A(f"v_mov_b32 {v(32+i)}, {SENT}")
        A(f"s_lshl_b32 {s(sA)}, {H}, 15")
        A(f"s_add_u32 {s(sA)}, {s(sA)}, {s(sRSB)}")
        for sl in range(2):
            for i in range(8):
                A(f"s_add_u32 {s(sB)}, {s(sA)}, {sl*0x100000 + i*4096}")
                A(f"buffer_store_dwordx4 {v(32,4)}, v12, {s(SWS,4)}, {s(sB)} offen")
        def kvm():
            A(f"s_lshl_b32 {s(sA)}, {s(sSEG)}, 5")
            A(f"s_add_u32 {s(sA)}, {s(sA)}, {H}")
            A(f"s_lshl_b32 {s(sA)}, {s(sA)}, 13")
            A(f"s_add_u32 {s(sA)}, {s(sA)}, {G.WS_KVM}")
            A(f"s_lshl_b32 {s(sB)}, {W}, 10")
            A(f"s_add_u32 {s(sB)}, {s(sB)}, {s(sA)}")
            A(f"buffer_store_dwordx4 {v(32,4)}, {v(vL16)}, {s(SWS,4)}, {s(sB)} offen sc1")
            A(f"s_lshl_b32 {s(sB)}, {W}, 9")
            A(f"s_add_u32 {s(sB)}, {s(sB)}, {s(sA)}")
            A(f"s_add_u32 {s(sB)}, {s(sB)}, 4096")
            A(f"buffer_store_dwordx2 {v(32,2)}, {v(vL8)}, {s(SWS,4)}, {s(sB)} offen sc1")
        seg_loop("L_wk_kvm", kvm)
        A("v_lshrrev_b32 v36, 2, v0")
        A("v_lshlrev_b32 v36, 10, v36")
        A("v_and_b32 v37, 3, v0")
        A("v_lshl_add_u32 v36, v37, 8, v36")
        A(f"s_lshr_b32 {s(sA)}, {H}, 4")
        A(f"s_lshl_b32 {s(sA)}, {s(sA)}, 14")
        A(f"s_and_b32 {s(sB)}, {H}, 15")
        A(f"s_lshl_b32 {s(sB)}, {s(sB)}, 4")
        A(f"s_add_u32 {s(sC)}, {s(sA)}, {s(sB)}")
        A(f"s_mul_i32 {s(sSEG)}, {W}, 7")
        A(f"s_add_u32 {s(sSEG)}, {s(sSEG)}, {s(sREP)}")
        A(f"s_mov_b32 {s(sD)}, 0xffff0000")
        A.label("L_wk_ln")
        A(f"s_lshl_b32 {s(sA)}, {s(sSEG)}, 5")
        A(f"s_add_u32 {s(sA)}, {s(sA)}, {H}")
        A(f"s_lshl_b32 {s(sA)}, {s(sA)}, 10")
        A(f"buffer_load_dwordx4 v[40:43], {v(vL16)}, {s(SX,4)}, {s(sA)} offen")
        A("s_waitcnt vmcnt(0)")
        for i in range(4):
            A(f"v_lshlrev_b32 {v(44+2*i)}, 16, {v(40+i)}")
            A(f"v_and_b32 {v(45+2*i)}, {s(sD)}, {v(40+i)}")
        def wsum(r, t):
            for n in (1, 2, 4, 8):
                A(f"v_add_f32_dpp {v(r)}, {v(r)}, {v(r)} row_ror:{n} row_mask:0xf bank_mask:0xf")
            for op in ("v_permlane16_swap_b32", "v_permlane32_swap_b32"):
                A(f"v_mov_b32 {v(t)}, {v(r)}")
                A(f"{op} {v(r)}, {v(t)}")
                A(f"v_add_f32 {v(r)}, {v(r)}, {v(t)}")
        A("v_add_f32 v52, v44, v45")
        for i in range(2, 8): A(f"v_add_f32 v52, v52, {v(44+i)}")
        wsum(52, 53)
        A("v_mul_f32 v52, 0x3b000000, v52")
        A("v_sub_f32 v54, v44, v52")
        A("v_mul_f32 v55, v54, v54")
        for i in range(1, 8):
            A(f"v_sub_f32 v54, {v(44+i)}, v52")
            A("v_fmac_f32 v55, v54, v54")
        wsum(55, 53)
        A("v_mul_f32 v55, 0x3b000000, v55")
        def rnd(r):
            A(f"v_cvt_pk_bf16_f32 {v(r)}, {v(r)}, {v(r)}")
            A(f"v_lshlrev_b32 {v(r)}, 16, {v(r)}")
        rnd(52); rnd(55)
        A("v_add_f32 v55, 0x3727c5ac, v55")
        rnd(55)
        A("v_sqrt_f32 v55, v55")
        rnd(55)
        A("v_rcp_f32 v55, v55")
        for i in range(4):
            A(f"v_sub_f32 {v(44+2*i)}, {v(44+2*i)}, v52")
            A(f"v_sub_f32 {v(45+2*i)}, {v(45+2*i)}, v52")
            A(f"v_cvt_pk_bf16_f32 {v(40+i)}, {v(44+2*i)}, {v(45+2*i)}")
            A(f"v_lshlrev_b32 {v(44+2*i)}, 16, {v(40+i)}")
            A(f"v_and_b32 {v(45+2*i)}, {s(sD)}, {v(40+i)}")
            A(f"v_mul_f32 {v(44+2*i)}, {v(44+2*i)}, v55")
            A(f"v_mul_f32 {v(45+2*i)}, {v(45+2*i)}, v55")
            A(f"v_cvt_pk_bf16_f32 {v(40+i)}, {v(44+2*i)}, {v(45+2*i)}")
        A(f"s_lshl_b32 {s(sA)}, {s(sSEG)}, 15")
        A(f"s_add_u32 {s(sA)}, {s(sA)}, {s(sC)}")
        A(f"buffer_store_dwordx4 v[40:43], v36, {s(SWS,4)}, {s(sA)} offen")
        A(f"s_add_u32 {s(sSEG)}, {s(sSEG)}, 28")
        A(f"s_cmp_lt_u32 {s(sSEG)}, 64")
        A("s_cbranch_scc1 L_wk_ln")
        A("s_waitcnt vmcnt(0)")
    def signal(word_soff, val):
        l = A.newlabel("sig")
        A(f"s_cmp_lg_u32 {W}, 0")
        A(f"s_cbranch_scc1 {l}")
        A(f"v_mov_b32 v13, {val}")
        A("s_mov_b64 exec, 1")
        A(f"buffer_atomic_add v13, off, {s(SDBG,4)}, {word_soff} sc1")
        A("s_mov_b64 exec, -1")
        A.label(l)
    def first(A):
        A(f"s_lshl_b32 {s(sA)}, {X}, 2")
        A(f"s_add_u32 {s(sA)}, {s(sA)}, {G.DBG_INIT*4}")
        signal(s(sA), 1)

    chunks = proj_chunks(SWK, 0) + proj_chunks(SWV, 2)
    chunks[0]['first'] = first
    A(f"s_lshl_b32 {s(sT0)}, {W}, 10")
    G.run_loader(A, chunks, after_prime=init_work)
    A(f"s_lshl_b32 {s(sA)}, {X}, 2")
    A.label("L_wk_iw")
    A(f"buffer_load_dword v13, off, {s(SDBG,4)}, {s(sA)} offset:{G.DBG_INIT*4} sc1")
    A("s_waitcnt vmcnt(0)")
    A("v_cmp_le_u32 vcc, 32, v13")
    A("s_cbranch_vccnz L_wk_iok")
    G.poll_budget(A, "L_wk_iw", "L_wk_iok")
    A.label("L_wk_iok")

    ACC, XF = 32, 64
    def xt_dma(segreg):
        A(f"s_lshl_b32 {s(sA)}, {segreg}, 15")
        A(f"s_lshl_b32 {s(sB)}, {W}, 13")
        A(f"s_add_u32 {s(sA)}, {s(sA)}, {s(sB)}")
        A(f"s_add_u32 {s(sB)}, {s(sB)}, {s(sBUF)}")
        for h2 in range(2):
            A(f"s_add_u32 m0, {s(sB)}, {h2*4096}")
            A(f"s_add_u32 {s(sC)}, {s(sA)}, {h2*4096}")
            for i in range(4):
                A(f"buffer_load_dwordx4 {v(vL16)}, {s(SWS,4)}, {s(sC)} offen offset:{i*1024} sc1 lds")
    def proj_pass(name, swap, epilogue, flag):
        A(f"s_mov_b32 {s(sBUF)}, {L_XT}")
        xt_dma(s(sREP))
        def body():
            A("s_waitcnt vmcnt(0)")
            A("s_barrier")
            if flag: flag_prev()
            A(f"v_add_u32 v14, {s(sBUF)}, {v(vL16)}")
            A(f"s_xor_b32 {s(sBUF)}, {s(sBUF)}, {L_XT ^ (L_XT + 32768)}")
            rd = lambda ks, rt: f"ds_read_b128 {v(XF + ((ks % 4)*2 + rt)*4, 4)}, v14 offset:{rt*16384 + ks*1024}"
            for ks in range(3):
                A(rd(ks, 0)); A(rd(ks, 1))
            A(f"s_add_u32 {s(sD)}, {s(sSEG)}, 7")
            A(f"s_min_u32 {s(sD)}, {s(sD)}, 63")
            xt_dma(s(sD))
            for ks in range(16):
                A(lg(4 if ks < 14 else (2 if ks == 14 else 0)))
                n = 0
                for rt in range(2):
                    for t in range(4):
                        d = v(ACC + (rt*4 + t)*4, 4)
                        wop, xop = a((t*16 + ks)*4, 4), v(XF + ((ks % 4)*2 + rt)*4, 4)
                        if t in swap: mf(d, xop, wop, "0" if ks == 0 else d)
                        else: mf(d, wop, xop, "0" if ks == 0 else d)
                        if n < 2 and ks + 3 < 16: A(rd(ks + 3, n))
                        n += 1
            epilogue()
        seg_loop(name, body)
        A("s_waitcnt vmcnt(0)")
        A("s_barrier")
        if flag: flag_prev()
    def flag_prev():
        l = A.newlabel("nf")
        A(f"s_sub_u32 {s(sA)}, {s(sSEG)}, 7")
        A(f"s_cbranch_scc1 {l}")
        A(f"s_and_b32 {s(sB)}, {s(sA)}, 3")
        A(f"s_lshl_b32 {s(sB)}, {s(sB)}, 3")
        A(f"s_lshl_b32 {s(sB)}, 1, {s(sB)}")
        A(f"s_and_b32 {s(sA)}, {s(sA)}, 60")
        A(f"s_add_u32 {s(sA)}, {s(sA)}, {G.DBG_KV*4}")
        signal(s(sA), s(sB))
        A.label(l)
    def pack8(dst, x, y):
        A(f"v_cvt_pk_bf16_f32 {v(dst)}, {v(x)}, {v(x+1)}")
        A(f"v_cvt_pk_bf16_f32 {v(dst+1)}, {v(x+2)}, {v(x+3)}")
        A(f"v_cvt_pk_bf16_f32 {v(dst+2)}, {v(y)}, {v(y+1)}")
        A(f"v_cvt_pk_bf16_f32 {v(dst+3)}, {v(y+2)}, {v(y+3)}")
    acc = lambda rt, t: ACC + (rt*4 + t)*4
    def seghead(dst, shift, base):
        A(f"s_lshl_b32 {s(dst)}, {s(sSEG)}, 5")
        A(f"s_add_u32 {s(dst)}, {s(dst)}, {H}")
        A(f"s_lshl_b32 {s(dst)}, {s(dst)}, {shift}")
        A(f"s_add_u32 {s(dst)}, {s(dst)}, {base}")
    def epi1():
        seghead(sA, 14, G.WS_KVX)
        A(f"s_lshl_b32 {s(sB)}, {W}, 10")
        A(f"s_add_u32 {s(sB)}, {s(sB)}, {s(sA)}")
        A(f"s_add_u32 {s(sC)}, {s(sB)}, 4096")
        A(f"s_lshl_b32 {s(sD)}, {W}, 11")
        A(f"s_add_u32 {s(sD)}, {s(sD)}, {s(sA)}")
        A(f"s_add_u32 {s(sD)}, {s(sD)}, 8192")
        pack8(96, acc(0,0), acc(0,1))
        A(f"buffer_store_dwordx4 v[96:99], {v(vL16)}, {s(SWS,4)}, {s(sB)} offen sc1")
        pack8(100, acc(1,0), acc(1,1))
        A(f"buffer_store_dwordx4 v[100:103], {v(vL16)}, {s(SWS,4)}, {s(sC)} offen sc1")
        pack8(104, acc(0,2), acc(1,2))
        A(f"buffer_store_dwordx4 v[104:107], {v(vL16)}, {s(SWS,4)}, {s(sD)} offen sc1")
        pack8(108, acc(0,3), acc(1,3))
        A(f"buffer_store_dwordx4 v[108:111], {v(vL16)}, {s(SWS,4)}, {s(sD)} offen offset:1024 sc1")
    proj_pass("L_wk_p1", (2, 3), epi1, True)

    chunks = proj_chunks(SWQ, 0)
    for b in range(2):
        for hb in range(2):
            for q in range(2):
                reads = []
                for p in range(4):
                    for m in range(2):
                        dst = a(((2 + m) * 16 + 4*p + 2*b + hb) * 4 + 2*q, 2)
                        reads.append(lambda R, dst=dst, p=p, m=m: f"ds_read_b64_tr_b16 {dst}, v11 offset:{R + p*1024 + 2*m*ISTR}")
                chunks.append(dict(srd=[SWG, SWG, SWU, SWU], voff=10,
                                   soff=[(64*b + 32*hb + 4*q + 2*(u & 1)) * 2752 for u in range(4)], reads=reads))
    A(f"s_lshl_b32 {s(sT0)}, {W}, 10")
    G.run_loader(A, chunks)
    A(f"s_lshl_b32 {s(sA)}, {H}, 2")
    A(f"s_add_u32 {s(sA)}, {s(sA)}, {W}")
    A(f"s_cmp_lt_u32 {s(sA)}, 86")
    A(f"s_cselect_b32 {s(sHM)}, -1, 0")
    def epi2():
        seghead(sA, 13, G.WS_QX)
        A(f"s_lshl_b32 {s(sB)}, {W}, 10")
        A(f"s_add_u32 {s(sB)}, {s(sB)}, {s(sA)}")
        A(f"s_add_u32 {s(sC)}, {s(sB)}, 4096")
        pack8(96, acc(0,0), acc(0,1))
        A(f"buffer_store_dwordx4 v[96:99], {v(vL16)}, {s(SWS,4)}, {s(sB)} offen")
        pack8(100, acc(1,0), acc(1,1))
        A(f"buffer_store_dwordx4 v[100:103], {v(vL16)}, {s(SWS,4)}, {s(sC)} offen")
        seghead(sA, 12, G.WS_HX)
        A(f"s_lshr_b32 {s(sB)}, {W}, 1")
        A(f"s_lshl_b32 {s(sB)}, {s(sB)}, 10")
        A(f"s_and_b32 {s(sC)}, {W}, 1")
        A(f"s_lshl_b32 {s(sC)}, {s(sC)}, 3")
        A(f"s_add_u32 {s(sB)}, {s(sB)}, {s(sC)}")
        A(f"s_add_u32 {s(sB)}, {s(sB)}, {s(sA)}")
        A(f"s_mov_b32 {s(sD)}, 0xffff0000")
        A(f"s_mov_b32 {s(sE)}, 0x3d372713")
        A(f"s_mov_b32 {s(sF)}, 0xc0135761")
        def rnd2(x):
            A(f"v_cvt_pk_bf16_f32 v112, {v(x)}, {v(x+1)}")
            A(f"v_lshlrev_b32 {v(x)}, 16, v112")
            A(f"v_and_b32 {v(x+1)}, {s(sD)}, v112")
        for rt in range(2):
            gt, up = acc(rt, 2), acc(rt, 3)
            for h2 in (0, 2): rnd2(gt + h2); rnd2(up + h2)
            for r in range(4):
                A(f"v_mul_f32 {v(113+r)}, {v(gt+r)}, {v(gt+r)}")
                A(f"v_fma_f32 {v(113+r)}, {v(113+r)}, {s(sE)}, 1.0")
                A(f"v_mul_f32 {v(113+r)}, {v(113+r)}, {v(gt+r)}")
                A(f"v_mul_f32 {v(113+r)}, {s(sF)}, {v(113+r)}")
                A(f"v_exp_f32 {v(113+r)}, {v(113+r)}")
            for r in range(4):
                A(f"v_add_f32 {v(113+r)}, 1.0, {v(113+r)}")
                A(f"v_rcp_f32 {v(113+r)}, {v(113+r)}")
            for r in range(4): A(f"v_mul_f32 {v(gt+r)}, {v(gt+r)}, {v(113+r)}")
            for h2 in (0, 2): rnd2(gt + h2)
            for r in range(4): A(f"v_mul_f32 {v(gt+r)}, {v(gt+r)}, {v(up+r)}")
            d = 104 + 2*rt
            A(f"v_cvt_pk_bf16_f32 {v(d)}, {v(gt)}, {v(gt+1)}")
            A(f"v_cvt_pk_bf16_f32 {v(d+1)}, {v(gt+2)}, {v(gt+3)}")
            A(f"v_and_b32 {v(d)}, {s(sHM)}, {v(d)}")
            A(f"v_and_b32 {v(d+1)}, {s(sHM)}, {v(d+1)}")
            A(f"buffer_store_dwordx2 {v(d,2)}, {v(vL16)}, {s(SWS,4)}, {s(sB)} offen offset:{rt*2048}")
    proj_pass("L_wk_p2", (), epi2, False)

    chunks = []
    A(f"s_lshl_b32 {s(sE)}, {H}, 17")
    A(f"s_lshl_b32 {s(sF)}, {H}, 16")
    for ks in range(6):
        for q in range(2):
            reads = [lambda R, ct=ct, ks=ks, q=q: f"ds_read_b64_tr_b16 {a((ks*8+ct)*4 + 2*q, 2)}, v9 offset:{R + ct*32}" for ct in range(8)]
            k2 = ks if ks < 4 else ks - 4
            chunks.append(dict(srd=SWO if ks < 4 else SWD, voff=8, sbase=sE if ks < 4 else sF,
                               soff=[(32*k2 + 16*q + rr) * 1024 for rr in range(4)], reads=reads))
    A(f"s_lshl_b32 {s(sT0)}, {W}, 10")
    G.run_loader(A, chunks)

    KX, QF, VX, HF, KM, VMR, VMO = 16, 48, 64, 80, 96, 112, 116
    T0, T1, T2, PM, ONE, OT, LL, MASK, SEL, M, M2, M3 = 132, 136, 140, 144, 148, 152, 168, 172, 180, 184, 185, 186
    XR, RES, OAC, OF, GG = 188, 168, 192, 16, 48
    A(f"s_and_b32 {s(sA)}, {W}, 1")
    A(f"s_lshl_b32 {s(sA)}, {s(sA)}, 4")
    A(f"v_add_u32 v14, {s(sA)}, {v(vR16)}")
    A(f"v_lshlrev_b32 v15, 2, {v(vG)}")
    A("v_mov_b32 v13, 0xf149f2ca")
    for i in range(8):
        A(f"v_add_u32 {v(M)}, {16*(i>>2) + (i&3)}, v15")
        A(f"v_cmp_gt_u32 vcc, {v(M)}, v14")
        A(f"v_cndmask_b32 {v(MASK+i)}, 0, v13, vcc")
    for i in range(4): A(f"v_mov_b32 {v(ONE+i)}, 0x3f803f80")
    for i in range(1, 4): A(f"v_mov_b32 {v(PM+i)}, 0")
    for e in range(4):
        for i in range(1, 4): A(f"v_mov_b32 {v(VMO+4*e+i)}, 0")
    A("v_and_b32 v13, 1, v0")
    A("v_cmp_eq_u32 vcc, 0, v13")
    A("v_mov_b32 v14, 0x3f80")
    A("v_mov_b32 v15, 0x3f800000")
    A("v_cndmask_b32 v14, v15, v14, vcc")
    A(f"v_lshrrev_b32 v13, 1, {v(vR16)}")
    for r in range(4):
        A(f"v_cmp_eq_u32 vcc, {r}, v13")
        A(f"v_cndmask_b32 {v(SEL+r)}, 0, v14, vcc")
    A("v_and_b32 v13, 3, v0")
    A("v_bfe_u32 v14, v0, 2, 1")
    A("v_lshl_add_u32 v13, v14, 4, v13")
    A("v_lshlrev_b32 v13, 10, v13")
    A(f"v_lshl_add_u32 v13, {v(vG)}, 3, v13")
    A(f"s_lshl_b32 {s(sA)}, {W}, 12")
    A(f"s_lshl_b32 {s(sB)}, {H}, 5")
    A(f"s_add_u32 {s(sA)}, {s(sA)}, {s(sB)}")
    A(f"v_add_u32 v13, {s(sA)}, v13")
    A(f"v_cmp_gt_u32 vcc, 8, {v(vR16)}")
    A("v_mov_b32 v14, 0x7ffffff0")
    A("v_cndmask_b32 v6, v14, v13, vcc")
    A(f"s_and_b32 {s(sA)}, {W}, 1")
    A(f"s_lshl_b32 {s(sA)}, {s(sA)}, 12")
    A(f"s_lshr_b32 {s(sB)}, {W}, 1")
    A(f"s_lshl_b32 {s(sB)}, {s(sB)}, 11")
    A(f"s_add_u32 {s(sA)}, {s(sA)}, {s(sB)}")
    A(f"v_add_u32 v7, {s(sA)}, {v(vL16)}")
    for ct in range(8):
        A(f"s_xor_b32 {s(sA)}, {H}, {ct}")
        A(f"s_lshl_b32 {s(sA)}, {s(sA)}, 10")
        A(f"s_lshl_b32 {s(sB)}, {W}, 18")
        A(f"s_add_u32 {s(sA)}, {s(sA)}, {s(sB)}")
        A(f"s_add_u32 {s(sRO+ct)}, {s(sA)}, {ct*32768}")
    A(f"s_mov_b32 {s(sCS)}, 0x3e0293ee")
    A(f"s_mov_b32 {s(sCS+1)}, 0x3e0293ee")
    def attn():
        ld = lambda d, so, off: A(f"buffer_load_dwordx4 {v(d,4)}, {v(vL16)}, {s(SWS,4)}, {s(so)} offen offset:{off} sc1")
        seghead(sA, 12, G.WS_HX)
        for i in range(4): ld(HF + 4*i, sA, i*1024)
        seghead(sA, 13, G.WS_QX)
        A(f"s_and_b32 {s(sB)}, {W}, 1")
        A(f"s_lshl_b32 {s(sB)}, {s(sB)}, 12")
        A(f"s_add_u32 {s(sA)}, {s(sA)}, {s(sB)}")
        for i in range(4): ld(QF + 4*i, sA, i*1024)
        seghead(sA, 14, G.WS_KVX)
        for i in range(4): ld(KX + 4*i, sA, i*1024)
        A(f"s_add_u32 {s(sB)}, {s(sA)}, 4096")
        for i in range(4): ld(KX + 16 + 4*i, sB, i*1024)
        A(f"s_lshr_b32 {s(sB)}, {W}, 1")
        A(f"s_lshl_b32 {s(sB)}, {s(sB)}, 12")
        A(f"s_add_u32 {s(sB)}, {s(sB)}, {s(sA)}")
        A(f"s_add_u32 {s(sB)}, {s(sB)}, 8192")
        for i in range(4): ld(VX + 4*i, sB, i*1024)
        A(f"s_lshl_b32 {s(sD)}, {s(sSEG)}, 15")
        A(f"buffer_load_dwordx2 {v(XR,2)}, v6, {s(SX,4)}, {s(sD)} offen")
        oac = lambda rt, ct: v(OAC + (ct*2 + rt)*4, 4)
        A("s_waitcnt vmcnt(17)")
        for k2 in range(2):
            for ct in range(8):
                for rt in range(2):
                    mf(oac(rt, ct), v(HF + (rt*2 + k2)*4, 4), a(((4 + k2)*8 + ct)*4, 4), "0" if k2 == 0 else oac(rt, ct))
        A("s_waitcnt vmcnt(5)")
        for ks in range(4):
            mf(v(T0,4), v(KX + 4*ks, 4), v(QF + 4*ks, 4), v(MASK,4) if ks == 0 else v(T0,4))
        for ks in range(4):
            mf(v(T1,4), v(KX + 16 + 4*ks, 4), v(QF + 4*ks, 4), v(MASK+4,4) if ks == 0 else v(T1,4))
        seghead(sA, 13, G.WS_KVM)
        A(f"s_lshr_b32 {s(sB)}, {W}, 1")
        A(f"s_lshl_b32 {s(sB)}, {s(sB)}, 10")
        A(f"s_add_u32 {s(sB)}, {s(sB)}, {s(sA)}")
        A(f"s_add_u32 {s(sB)}, {s(sB)}, 4096")
        A.label("L_wk_km")
        for i in range(4): ld(KM + 4*i, sA, i*1024)
        A(f"buffer_load_dwordx2 {v(VMR,2)}, {v(vL8)}, {s(SWS,4)}, {s(sB)} offen sc1")
        A(f"buffer_load_dwordx2 {v(VMR+2,2)}, {v(vL8)}, {s(SWS,4)}, {s(sB)} offen offset:512 sc1")
        A("s_waitcnt vmcnt(0)")
        A(f"v_max_u32 {v(M)}, {v(KM)}, {v(KM+1)}")
        for i in range(2, 20, 2): A(f"v_max3_u32 {v(M)}, {v(M)}, {v(KM+i)}, {v(KM+i+1)}")
        A(f"v_cmp_eq_u32 vcc, {SENT}, {v(M)}")
        A("s_cbranch_vccz L_wk_kmok")
        A("s_sleep 4")
        G.poll_budget(A, "L_wk_km", "L_wk_kmok")
        A.label("L_wk_kmok")
        for ks in range(4):
            mf(v(T2,4), v(KM + 4*ks, 4), v(QF + 4*ks, 4), "0" if ks == 0 else v(T2,4))
        for e in range(4): A(f"v_mov_b32 {v(VMO+4*e)}, {v(VMR+e)}")
        A(f"v_max3_f32 {v(M)}, {v(T0)}, {v(T0+1)}, {v(T0+2)}")
        A(f"v_max3_f32 {v(M)}, {v(M)}, {v(T0+3)}, {v(T1)}")
        A(f"v_max3_f32 {v(M)}, {v(M)}, {v(T1+1)}, {v(T1+2)}")
        A(f"v_max_f32 {v(M)}, {v(M)}, {v(T1+3)}")
        A(f"v_max3_f32 {v(M2)}, {v(M)}, {v(T2)}, {v(T2+1)}")
        A(f"v_max3_f32 {v(M)}, {v(M)}, {v(T2)}, {v(T2+1)}")
        A(f"v_permlane32_swap_b32 {v(M)}, {v(M2)}")
        A(f"v_max_f32 {v(M3)}, {v(M)}, {v(M2)}")
        A(f"v_max_f32 {v(M)}, {v(M)}, {v(M2)}")
        A(f"v_permlane16_swap_b32 {v(M)}, {v(M3)}")
        A(f"v_max_f32 {v(M)}, {v(M)}, {v(M3)}")
        A(f"v_mul_f32 {v(M)}, {s(sCS)}, {v(M)}")
        for r in range(T0, T0 + 10, 2):
            A(f"v_pk_fma_f32 {v(r,2)}, {v(r,2)}, {s(sCS,2)}, {v(M,2)} op_sel_hi:[1,1,0] neg_lo:[0,0,1] neg_hi:[0,0,1]")
        for r in range(T0, T0 + 10): A(f"v_exp_f32 {v(r)}, {v(r)}")
        for i in range(4): A(f"v_cvt_pk_bf16_f32 {v(T0+i)}, {v(T0+2*i)}, {v(T0+2*i+1)}")
        A(f"v_cvt_pk_bf16_f32 {v(PM)}, {v(T2)}, {v(T2+1)}")
        mf(v(LL,4), v(ONE,4), v(T0,4), "0")
        mf(v(LL,4), v(ONE,4), v(PM,4), v(LL,4))
        for e in range(4):
            mf(v(OT+4*e,4), v(VX+4*e,4), v(T0,4), "0")
            mf(v(OT+4*e,4), v(VMO+4*e,4), v(PM,4), v(OT+4*e,4))
        A(f"v_rcp_f32 {v(M)}, {v(LL)}")
        for r in range(OT, OT + 16): A(f"v_mul_f32 {v(r)}, {v(r)}, {v(M)}")
        pack8(OT, OT, OT + 4)
        pack8(OT + 4, OT + 8, OT + 12)
        A(f"ds_write_b128 v7, {v(OT,4)} offset:{L_OI}")
        A(f"ds_write_b128 v7, {v(OT+4,4)} offset:{L_OI+1024}")
        A(lg(0))
        A("s_barrier")
        for i in range(8): A(f"ds_read_b128 {v(OF+4*i,4)}, {v(vL16)} offset:{L_OI + i*1024}")
        A(f"v_add_u32 v13, {s(sRSB)}, {v(vL16)}")
        A(lg(0))
        A("s_barrier")
        def fin(ct):
            x = OAC + ct*8
            pack8(x, x, x + 4)
            A(f"buffer_store_dwordx4 {v(x,4)}, v13, {s(SWS,4)}, {s(sRO+ct)} offen")
        for ct in range(8):
            for ks in range(4):
                for rt in range(2):
                    mf(oac(rt, ct), v(OF + (rt*4 + ks)*4, 4), a((ks*8 + ct)*4, 4), oac(rt, ct))
            if ct: fin(ct - 1)
        fin(7)
        A(f"s_lshl_b32 {s(sA)}, {H}, 15")
        A(f"s_add_u32 {s(sA)}, {s(sA)}, {s(sRSB)}")
        A.label("L_wk_rs")
        for i in range(8):
            A(f"s_add_u32 {s(sB)}, {s(sA)}, {i*4096}")
            A(f"buffer_load_dwordx4 {v(GG+4*i,4)}, v12, {s(SWS,4)}, {s(sB)} offen sc1")
        A("s_waitcnt vmcnt(0)")
        for i in range(8):
            mf(v(RES,4), v(GG+4*i,4), v(SEL,4), "0" if i == 0 else v(RES,4))
            if i == 0: A(f"v_max_u32 {v(M)}, {v(GG)}, {v(GG+1)}")
            else: A(f"v_max3_u32 {v(M)}, {v(M)}, {v(GG+4*i)}, {v(GG+4*i+1)}")
            A(f"v_max3_u32 {v(M)}, {v(M)}, {v(GG+4*i+2)}, {v(GG+4*i+3)}")
        A(f"v_cmp_eq_u32 vcc, {SENT}, {v(M)}")
        A("s_cbranch_vccz L_wk_rsok")
        A("s_sleep 1")
        G.poll_budget(A, "L_wk_rs", "L_wk_rsok")
        A.label("L_wk_rsok")
        A(f"s_mov_b32 {s(sC)}, 0xffff0000")
        A(f"v_lshlrev_b32 {v(M)}, 16, {v(XR)}")
        A(f"v_and_b32 {v(M2)}, {s(sC)}, {v(XR)}")
        A(f"v_lshlrev_b32 {v(M3)}, 16, {v(XR+1)}")
        A(f"v_and_b32 {v(XR+1)}, {s(sC)}, {v(XR+1)}")
        A("s_nop 3")
        A(f"v_add_f32 {v(RES)}, {v(RES)}, {v(M)}")
        A(f"v_add_f32 {v(RES+1)}, {v(RES+1)}, {v(M2)}")
        A(f"v_add_f32 {v(RES+2)}, {v(RES+2)}, {v(M3)}")
        A(f"v_add_f32 {v(RES+3)}, {v(RES+3)}, {v(XR+1)}")
        A(f"v_cvt_pk_bf16_f32 {v(RES)}, {v(RES)}, {v(RES+1)}")
        A(f"v_cvt_pk_bf16_f32 {v(RES+1)}, {v(RES+2)}, {v(RES+3)}")
        A(f"buffer_store_dwordx2 {v(RES,2)}, v6, {s(SOUT,4)}, {s(sD)} offen")
        for i in range(4): A(f"v_mov_b32 {v(GG+i)}, {SENT}")
        for i in range(8):
            A(f"s_add_u32 {s(sB)}, {s(sA)}, {i*4096}")
            A(f"buffer_store_dwordx4 {v(GG,4)}, v12, {s(SWS,4)}, {s(sB)} offen")
        A(f"s_xor_b32 {s(sRSB)}, {s(sRSB)}, 0x100000")
    seg_loop("L_wk_at", attn)
    A("s_waitcnt vmcnt(0)")
    A("s_endpgm")
```

```python
import sys
from asmlib import *

NAME = "parallel_sum__memory_aug_recurrent_mem_tr__geglu_ffn__prompt"
KN = NAME + "_kernel"

WS_XN   = 0x0000000
WS_KVX  = 0x1000000
WS_QX   = 0x3000000
WS_HX   = 0x4000000
WS_KVM  = 0x5000000
WS_HOP1 = 0x6000000
WS_HOP2 = 0x6200000
WS_PROF = 0x6300000
WS_RS   = 0x7000000
WS_SIZE = 0x10000000

DBG_RANK = 0
DBG_INIT = 8
DBG_KV   = 16

SX, SWS, SDBG, SWQ, SWK, SWV, SWO, SWG, SWU, SWD, SOUT, SM0 = 4, 8, 12, 16, 20, 24, 28, 32, 36, 40, 44, 48
sWAVE, sXCC, sRANK, sBUD = 52, 53, 54, 55
sT0, sT1, sT2, sT3 = 56, 57, 58, 59
sSTEP, sCLS, sH1L, sKXL, sH1S0, sKVX, sKVM, sH2N, sKM = 60, 61, 62, 63, 64, 68, 69, 70, 71
sCSC, sVM, sONE, sTCH, sXO = 72, 75, 100, 3, 76
sVX, sTC2, sFL, sH1R = 77, 78, 79, 69
sBD2, sSELM, sM0P, sARM, sFS, sH2, sH2P, sX2 = 74, 92, 66, 67, 5, 6, 40, 42
ABSSTEP = 40
S10, S20, N10, N20 = 0x249, 0x14, 1, 1
S11, S21, N11, N21 = 0x010, 0x10, 3, 3
C1R = 3
P1REP, P2REP, P1PRE, P2PRE, P1PAD = 3, 3, 6, 5, 0
sPROF = 80

SENT = -1
OPT = set(sys.argv[2:])
for o_ in list(OPT):
    if '=' in o_:
        k_, v_ = o_.split('=')
        globals()[k_] = int(v_, 0)

SCHED = {1: (S11, S21, N11, N21), 0: (S10, S20, N10, N20)}

def srd(A, base, argoff, nbytes):
    A(f"s_load_dwordx2 {s(base,2)}, s[0:1], {argoff}")
def srd2(A, base, nbytes):
    A(f"s_mov_b32 {s(base+2)}, {nbytes:#x}")
    A(f"s_mov_b32 {s(base+3)}, 0x00020000")

def prologue(A):
    if 'prof' in OPT: A("s_memrealtime s[96:97]")
    A("s_cmp_ge_u32 s2, 256")
    A("s_cbranch_scc1 L_end")
    bufs = [(SX, 0, 2097152), (SM0, 8, 8192), (SWQ, 16, 4194304), (SWK, 24, 4194304), (SWV, 32, 4194304),
            (SWO, 40, 4194304), (SWG, 64, 1409024), (SWU, 72, 1409024), (SWD, 80, 1409024),
            (SOUT, 88, 2097152), (SDBG, 96, 256), (SWS, 104, WS_SIZE)]
    for b, off, n in bufs: srd(A, b, off, n)
    A(f"s_getreg_b32 {s(sXCC)}, hwreg(HW_REG_XCC_ID)")
    A(f"s_and_b32 {s(sXCC)}, {s(sXCC)}, 7")
    A("v_lshrrev_b32 v1, 6, v0")
    A(f"v_readfirstlane_b32 {s(sWAVE)}, v1")
    A("v_and_b32 v0, 63, v0")
    A(f"s_mov_b32 {s(sBUD)}, 0x400000")
    A("s_waitcnt lgkmcnt(0)")
    for b, off, n in bufs: srd2(A, b, n)
    A(f"s_cmp_lg_u32 {s(sWAVE)}, 0")
    A("s_cbranch_scc1 L_rank_wait")
    A(f"s_lshl_b32 {s(sT0)}, {s(sXCC)}, 2")
    A(f"v_mov_b32 v2, {s(sT0)}")
    A("v_mov_b32 v3, 1")
    A("s_mov_b64 exec, 1")
    A(f"buffer_atomic_add v3, v2, {s(SDBG,4)}, 0 offen offset:{DBG_RANK*4} sc0 sc1")
    A("s_waitcnt vmcnt(0)")
    A("v_mov_b32 v2, 0")
    A("ds_write_b32 v2, v3")
    A("s_mov_b64 exec, -1")
    A("s_waitcnt lgkmcnt(0)")
    A.label("L_rank_wait")
    A("s_barrier")
    A("v_mov_b32 v2, 0")
    A("ds_read_b32 v3, v2")
    A("s_waitcnt lgkmcnt(0)")
    A(f"v_readfirstlane_b32 {s(sRANK)}, v3")
    A("s_barrier")
    A(f"s_cmp_ge_u32 {s(sRANK)}, 32")
    A("s_cbranch_scc1 L_end")

def poll_budget(A, lretry, lok):
    A(f"s_cmp_eq_u32 {s(sBUD)}, 0")
    A(f"s_cbranch_scc1 {lok}")
    A(f"s_sub_u32 {s(sBUD)}, {s(sBUD)}, 1")
    A(f"s_branch {lretry}")

RING = 5
ISTR = RING * 4096 + 32

def run_loader(A, chunks, after_prime=None):
    n = len(chunks)
    def issue(i):
        c = chunks[i]
        slot = i % RING
        for rr in range(4):
            A(f"s_add_u32 m0, {s(sT0)}, {rr*ISTR + slot*4096}")
            if c.get('sbase') is not None:
                A(f"s_add_u32 {s(sT1)}, {s(c['sbase'])}, {c['soff'][rr]}")
            else:
                A(f"s_mov_b32 {s(sT1)}, {c['soff'][rr]}")
            A(f"buffer_load_dwordx4 {v(c['voff'])}, {s(c['srd'][rr] if isinstance(c['srd'], list) else c['srd'],4)}, {s(sT1)} offen lds")
    for i in range(min(RING - 1, n)): issue(i)
    if after_prime: after_prime(A)
    for i in range(n):
        infl = min(RING - 2, n - 1 - i)
        A(f"s_waitcnt vmcnt({infl*4}) lgkmcnt(0)")
        A("s_barrier")
        if i + RING - 1 < n: issue(i + RING - 1)
        if i == 0 and chunks[0].get('first'): chunks[0]['first'](A)
        for t in chunks[i]['reads']: A(t(( i % RING) * 4096))
        if chunks[i].get('post'):
            A("s_waitcnt lgkmcnt(0)")
            for t in chunks[i]['post']: A(t)
    A("s_waitcnt lgkmcnt(0)")
    A("s_barrier")

L_MEM, L_QK, L_O, L_KX, L_WB, L_WA = 0, 8192, 24576, 16384, 32768, 98304
QKS = 1088
vLANE, vIDX, vL16, vMW, vMR1, vMR2, vMR3, vQKW, vXR, vP, vWA, vWB, vH1S, vFLAG, vH2S, vSEL = range(16)
RA, RK, RQ, RV, RKX, RS_, RVX, RT = 16, 48, 56, 64, 72, 104, 120, 116
RX = 48

OSEQ = [(a_, 0) for a_ in range(4)] + [(a_, i_) for a_ in range(4) for i_ in (1, 2, 3)]

def team_opnd(mat, t, j):
    if mat == 'Q': return ('a', (t * 8 + j) * 8)
    if mat == 'V': return ('a', 128 + (t * 8 + j) * 8)
    if mat == 'K': return None if j < 6 else ('v', 128 + ((j - 6) * 2 + t) * 8)
    if mat == 'O':
        n = OSEQ.index((t, j))
        return None if n < 4 else ('v', 160 + (n - 4) * 8)
def rtxt(loc, off, n): return (a if loc[0] == 'a' else v)(loc[1] + off, n)

def team(A, prof=False, nsteps=64):
    W, H = s(sWAVE), s(sRANK)
    A.label("L_team")
    if prof: A("s_mov_b32 s4, s96")
    A("v_and_b32 v16, 15, v0")
    A("v_lshrrev_b32 v17, 4, v0")
    A(f"v_lshlrev_b32 {v(vL16)}, 4, v0")
    A("v_lshrrev_b32 v18, 3, v0")
    A("v_lshlrev_b32 v18, 7, v18")
    A(f"v_add_u32 {v(vP)}, v18, {v(vL16)}")
    A(f"s_lshr_b32 {s(sT1)}, {W}, 1")
    A(f"s_lshl_b32 {s(sT1)}, {s(sT1)}, 12")
    A(f"s_and_b32 {s(sCLS)}, {W}, 1")
    A(f"s_lshl_b32 {s(sCLS)}, {s(sCLS)}, 7")
    A(f"s_add_u32 {s(sCLS)}, {s(sCLS)}, {s(sT1)}")
    A(f"s_lshl_b32 {s(sT0)}, {H}, 13")
    A(f"s_add_u32 {s(sT0)}, {s(sT0)}, {s(sCLS)}")
    A(f"s_add_u32 {s(sH1L)}, {s(sT0)}, {WS_HOP1}")
    for i in range(4): A(f"v_mov_b32 {v(124+i)}, {SENT}")
    A(f"s_add_u32 {s(sT1)}, {s(sH1L)}, 0x40000")
    for i in range(2):
        A(f"buffer_store_dwordx4 {v(124,4)}, {v(vP)}, {s(SWS,4)}, {s(sH1L)} offen offset:{i*2048}")
        A(f"buffer_store_dwordx4 {v(124,4)}, {v(vP)}, {s(SWS,4)}, {s(sT1)} offen offset:{i*2048}")
    A("v_and_b32 v18, 1, v17")
    A("v_lshrrev_b32 v19, 1, v17")
    A("v_and_b32 v20, 1, v0")
    A("v_lshl_add_u32 v21, v20, 1, v18")
    A("v_lshlrev_b32 v21, 4, v21")
    A("v_and_b32 v20, 2, v0")
    A("v_add_u32 v20, v20, v19")
    A("v_lshl_add_u32 v21, v20, 2, v21")
    A(f"s_and_b32 {s(sT0)}, {H}, 24")
    A(f"s_lshl_b32 {s(sT1)}, {W}, 1")
    A(f"s_add_u32 {s(sT0)}, {s(sT0)}, {s(sT1)}")
    A(f"s_bfe_u32 {s(sT1)}, {H}, 0x10002")
    A(f"s_add_u32 {s(sT0)}, {s(sT0)}, {s(sT1)}")
    A(f"s_and_b32 {s(sT1)}, {H}, 3")
    A(f"s_lshr_b32 {s(sT2)}, {H}, 1")
    A(f"s_lshl_b32 {s(sT2)}, {s(sT2)}, 8")
    A(f"s_and_b32 {s(sT3)}, {H}, 1")
    A(f"s_lshl_b32 {s(sT3)}, {s(sT3)}, 6")
    A(f"s_add_u32 {s(sT2)}, {s(sT2)}, {s(sT3)}")
    A(f"s_add_u32 {s(sT2)}, {s(sT2)}, {s(sCLS)}")
    A(f"s_add_u32 {s(sT2)}, {s(sT2)}, {WS_HOP2}")
    A(f"v_add_u32 {v(vH2S)}, {s(sT2)}, v21")
    A("v_cmp_gt_u32 vcc, 4, v16")
    A("v_mov_b32 v23, 0x7ffffff0")
    A(f"v_cndmask_b32 {v(vH2S)}, v23, {v(vH2S)}, vcc")
    A(f"s_lshl_b32 {s(sT0)}, {s(sT0)}, 5")
    A(f"s_lshl_b32 {s(sT1)}, {s(sT1)}, 11")
    A(f"s_add_u32 {s(sT0)}, {s(sT0)}, {s(sT1)}")
    A("v_and_b32 v22, 3, v0")
    A("v_lshl_add_u32 v22, v22, 1, v19")
    A("v_lshlrev_b32 v22, 1, v22")
    A("v_lshl_add_u32 v22, v18, 10, v22")
    A(f"buffer_load_ushort v24, v22, {s(SM0,4)}, {s(sT0)} offen")
    A(f"buffer_load_ushort v25, v22, {s(SM0,4)}, {s(sT0)} offen offset:16")
    A(f"s_movk_i32 {s(sT1)}, 0x2000")
    A(f"buffer_store_dword v124, {v(vH2S)}, {s(SWS,4)}, {s(sT1)} offen")
    A("s_waitcnt vmcnt(1)")
    A("v_lshl_or_b32 v26, v25, 16, v24")
    A(f"buffer_store_dword v26, {v(vH2S)}, {s(SWS,4)}, 0 offen")
    A("v_lshlrev_b32 v25, 3, v18")
    A("v_xor_b32 v25, v25, v16")
    A("v_lshlrev_b32 v25, 4, v25")
    A("v_lshl_add_u32 v25, v19, 17, v25")
    A("v_lshl_add_u32 v25, v18, 15, v25")
    A(f"s_lshl_b32 {s(sT0)}, {W}, 18")
    A(f"s_lshl_b32 {s(sT1)}, {H}, 8")
    A(f"s_add_u32 {s(sT0)}, {s(sT0)}, {s(sT1)}")
    A(f"v_add_u32 v100, {s(sT0)}, v25")
    A("v_lshlrev_b32 v25, 14, v18")
    A("v_lshl_add_u32 v25, v19, 12, v25")
    A("v_lshl_add_u32 v25, v16, 4, v25")
    A(f"s_lshl_b32 {s(sT0)}, {H}, 17")
    A(f"s_lshl_b32 {s(sT1)}, {W}, 8")
    A(f"s_add_u32 {s(sT0)}, {s(sT0)}, {s(sT1)}")
    A(f"v_add_u32 v101, {s(sT0)}, v25")
    A("v_bfe_u32 v25, v0, 2, 2")
    A(f"v_mul_u32_u24 v25, {ISTR}, v25")
    A("v_lshl_add_u32 v25, v17, 8, v25")
    A("v_and_b32 v26, 3, v0")
    A("v_lshlrev_b32 v27, 7, v18")
    A(f"s_lshl_b32 {s(sT0)}, {W}, 6")
    A(f"v_xor_b32 v27, {s(sT0)}, v27")
    A("v_lshl_add_u32 v27, v26, 3, v27")
    A("v_add_u32 v27, v27, v25")
    for jp in range(4):
        A(f"v_add_u32 {v(102+jp)}, {jp*1024}, v27")
    A("v_lshrrev_b32 v27, 1, v26")
    A("v_lshlrev_b32 v27, 5, v27")
    A("v_and_b32 v28, 1, v0")
    A("v_lshl_add_u32 v27, v28, 3, v27")
    A("v_lshl_add_u32 v27, v17, 8, v27")
    A("v_bfe_u32 v28, v0, 3, 1")
    A("v_lshl_add_u32 v27, v28, 4, v27")
    A("v_bfe_u32 v28, v0, 2, 1")
    A(f"v_mul_u32_u24 v28, {ISTR}, v28")
    A("v_add_u32 v27, v27, v28")
    for i in range(4):
        A(f"s_xor_b32 {s(80+i)}, {W}, {i}")
        A(f"s_lshl_b32 {s(80+i)}, {s(80+i)}, 15")
    A(f"s_lshl_b32 {s(sT0)}, {W}, 10")
    A(f"v_add_u32 v106, {s(sT0)}, v27")
    A(f"s_lshl_b32 {s(sT1)}, {W}, 11")
    A(f"s_add_u32 {s(sT2)}, {s(sT1)}, {L_WA}")
    A(f"v_add_u32 {v(vWA)}, {s(sT2)}, {v(vL16)}")
    A(f"s_add_u32 {s(sT2)}, {s(sT1)}, {L_WB}")
    A(f"v_add_u32 {v(vWB)}, {s(sT2)}, {v(vL16)}")
    A(f"v_add_u32 {v(vMW)}, {s(sT1)}, {v(vL16)}")
    for p, r in ((1, vMR1), (2, vMR2), (3, vMR3)):
        A(f"s_xor_b32 {s(sT2)}, {W}, {p}")
        A(f"s_lshl_b32 {s(sT2)}, {s(sT2)}, 11")
        A(f"v_add_u32 {v(r)}, {s(sT2)}, {v(vL16)}")
    A("v_and_b32 v28, 2, v0")
    A("v_cmp_eq_u32 vcc, 0, v28")
    A("v_mov_b32 v29, 0xeeee")
    A("v_mov_b32 v30, 0x4444")
    A(f"v_cndmask_b32 {v(vIDX)}, v29, v30, vcc")
    A(f"v_mul_u32_u24 v28, {QKS}, v17")
    A("v_lshl_add_u32 v28, v16, 3, v28")
    A(f"s_lshl_b32 {s(sT2)}, {W}, 8")
    A(f"s_add_u32 {s(sT2)}, {s(sT2)}, {L_QK}")
    A(f"v_add_u32 {v(vQKW)}, {s(sT2)}, v28")
    A(f"v_mul_u32_u24 v28, {QKS}, v26")
    A("v_lshrrev_b32 v29, 2, v0")
    A("v_lshl_add_u32 v28, v29, 3, v28")
    A(f"v_add_u32 {v(vXR)}, {L_QK}, v28")
    A("v_lshrrev_b32 v30, 3, v16")
    A("v_lshl_add_u32 v30, v30, 2, v17")
    A("v_lshlrev_b32 v28, 13, v30")
    A("v_and_b32 v29, 7, v0")
    A("v_lshl_add_u32 v28, v29, 3, v28")
    A("v_lshlrev_b32 v30, 2, v30")
    A(f"s_xor_b32 {s(sT3)}, {W}, {H}")
    A(f"v_xor_b32 v30, {s(sT3)}, v30")
    A("v_lshrrev_b32 v29, 1, v30")
    A("v_lshl_add_u32 v28, v29, 8, v28")
    A("v_and_b32 v29, 1, v30")
    A("v_lshl_add_u32 v28, v29, 6, v28")
    A(f"s_lshl_b32 {s(sT2)}, {W}, 16")
    A(f"v_add_u32 {v(vH1S)}, {s(sT2)}, v28")
    A(f"s_lshl_b32 {s(sT0)}, {W}, 10")

    chunks = []
    def first(A):
        l = A.newlabel("ini")
        A(f"s_cmp_lg_u32 {W}, 0")
        A(f"s_cbranch_scc1 {l}")
        A("v_mov_b32 v107, 0")
        A("v_mov_b32 v108, 1")
        A("s_mov_b64 exec, 1")
        A(f"buffer_atomic_add v108, v107, {s(SDBG,4)}, 0 offen offset:{DBG_INIT*4} sc1")
        A("s_mov_b64 exec, -1")
        A("s_waitcnt vmcnt(0)")
        A.label(l)
    for mat, sr in (('K', SWK), ('Q', SWQ), ('V', SWV)):
        for b in range(2):
            for hb in range(2):
                for q in range(2):
                    reads, post = [], []
                    tmp = 108
                    for jp in range(4):
                        j = 2 * jp + b
                        for t in range(2):
                            loc = team_opnd(mat, t, j)
                            if loc is None and j >= 4:
                                dst = v(16 + (2*(j-4)+t)*8 + 4*hb + 2*q, 2)
                            elif loc is None:
                                dst = v(tmp, 2)
                                post.append(f"ds_write_b64 {v(vWA)}, {dst} offset:{(2*j+t)*8192 + hb*1024 + q*8}")
                                tmp += 2
                            else:
                                dst = rtxt(loc, 4 * hb + 2 * q, 2)
                            reads.append(lambda R, dst=dst, jp=jp, t=t: f"ds_read_b64_tr_b16 {dst}, {v(102+jp)} offset:{R + t*32}")
                    chunks.append(dict(srd=sr, voff=100, soff=[(256*b + 128*hb + q + 8*(rr&1) + 2*(rr>>1)) * 8192 for rr in range(4)],
                                       reads=reads, post=post))
    for i in range(4):
        for hb in range(2):
            reads = []
            for q in range(2):
                for a_ in range(4):
                    loc = team_opnd('O', a_, i)
                    if loc is None: loc = ('v', 48 + OSEQ.index((a_, i)) * 8)
                    dst = rtxt(loc, 4 * hb + 2 * q, 2)
                    reads.append(lambda R, dst=dst, a_=a_, q=q: f"ds_read_b64_tr_b16 {dst}, v106 offset:{R + 2*q*ISTR + 64*a_}")
            chunks.append(dict(srd=SWO, voff=101, sbase=80+i, soff=[(8*hb + u) * 1024 for u in range(4)], reads=reads))
    chunks[0]['first'] = first
    run_loader(A, chunks)
    for i in range(8):
        for hb in range(2):
            A(f"ds_write_b128 {v(vWB)}, {v(16+i*8+hb*4,4)} offset:{i*8192 + hb*1024}")
    A("v_mov_b32 v107, 0")
    A.label("L_tinit")
    A(f"buffer_load_dword v108, v107, {s(SDBG,4)}, 0 offen offset:{DBG_INIT*4} sc1")
    A("s_waitcnt vmcnt(0)")
    A("v_cmp_le_u32 vcc, 32, v108")
    A("s_cbranch_vccnz L_tinit_ok")
    poll_budget(A, "L_tinit", "L_tinit_ok")
    A.label("L_tinit_ok")

    A(f"s_mov_b32 {s(sSTEP)}, 0")
    A(f"s_mov_b32 {s(sH2)}, {WS_HOP2}")
    A(f"s_movk_i32 {s(sH2N)}, 0x2000")
    for q in range(2): A(f"s_mov_b32 {s(sH1S0+q)}, {WS_HOP1 + q*4096}")
    A(f"s_lshl_b32 {s(sT0)}, {H}, 14")
    A(f"s_lshl_b32 {s(sT1)}, {W}, 11")
    A(f"s_add_u32 {s(sT0)}, {s(sT0)}, {s(sT1)}")
    A(f"s_add_u32 {s(sKVX)}, {s(sT0)}, {WS_KVX}")
    A(f"s_add_u32 {s(sTCH)}, {s(sT1)}, 0x80000")
    A(f"s_lshl_b32 {s(sT0)}, {H}, 13")
    A(f"s_add_u32 {s(sKVM)}, {s(sT0)}, {WS_KVM}")
    A(f"s_mov_b32 {s(sCSC)}, 0x3e0293ee")
    if prof:
        for i in range(20): A(f"s_mov_b32 {s(sPROF+i)}, 0")
    NST = 14
    def stamp(k):
        if prof: A(f"s_memtime {s(18+2*k,2)}")
    def stamp_end(n):
        if not prof: return
        if 'abs' in OPT:
            A("s_memtime s[44:45]")
            A("s_memrealtime s[46:47]")
        A("s_waitcnt lgkmcnt(0)")
        if 'abs' in OPT:
            A("s_sub_u32 s2, s44, s48"); A("s_add_u32 s50, s50, s2")
            A("s_sub_u32 s2, s46, s49"); A("s_add_u32 s51, s51, s2")
            l = A.newlabel("abs")
            A(f"s_cmp_eq_u32 {s(sSTEP)}, {ABSSTEP}")
            A(f"s_cbranch_scc0 {l}")
            for k in range(n + 1): A(f"s_mov_b32 {s(sPROF+k)}, {s(16+2*k)}")
            A.label(l)
            A(f"s_mov_b32 s16, {s(16+2*n)}")
            return
        for k in range(n):
            A(f"s_sub_u32 s2, {s(18+2*k)}, {s(16+2*k)}")
            A(f"s_add_u32 {s(sPROF+k)}, {s(sPROF+k)}, s2")
        A(f"s_mov_b32 s16, {s(16+2*n)}")

    def kv_flag_addr(delta):
        A(f"s_add_u32 {s(sT1)}, {s(sSTEP)}, {delta}")
        A(f"s_and_b32 {s(sT0)}, {s(sT1)}, 60")
        A(f"s_and_b32 {s(sT1)}, {s(sT1)}, 3")
        A(f"s_lshl_b32 {s(sT1)}, {s(sT1)}, 3")
    def kv_wait(delta, have=None):
        l0, l1 = A.newlabel("kvw"), A.newlabel("kvok")
        kv_flag_addr(delta)
        if have is not None:
            A(f"v_bfe_u32 {v(have)}, {v(have)}, {s(sT1)}, 8")
            A(f"v_cmp_le_u32 vcc, 32, {v(have)}")
            A(f"s_cbranch_vccnz {l1}")
        A.label(l0)
        A(f"buffer_load_dword {v(vFLAG)}, off, {s(SDBG,4)}, {s(sT0)} offset:{DBG_KV*4} sc1")
        A("s_waitcnt vmcnt(0)")
        A(f"v_bfe_u32 {v(vFLAG)}, {v(vFLAG)}, {s(sT1)}, 8")
        A(f"v_cmp_le_u32 vcc, 32, {v(vFLAG)}")
        A(f"s_cbranch_vccnz {l1}")
        poll_budget(A, l0, l1)
        A.label(l1)
    def k_dma(soff):
        A(f"buffer_load_dwordx4 {v(vL16)}, {s(SWS,4)}, {s(soff)} offen sc1 lds")
        A(f"buffer_load_dwordx4 {v(vL16)}, {s(SWS,4)}, {s(soff)} offen offset:1024 sc1 lds")

    def smf(d, aop, bop): A(f"v_smfmac_f32_16x16x64_bf16 {v(d,4)}, {aop}, {bop}, {v(vIDX)}")
    def mf(d, aop, bop, c): A(f"v_mfma_f32_16x16x32_bf16 {v(d,4)}, {v(aop,4)}, {v(bop,4)}, {c}")
    KB = [RA+8, RA+16, RKX, RKX+8, RKX+16, RKX+24, RKX+32, RKX+40, RKX, RKX+8, RKX+16, RKX+24]
    def kbuf(i): return KB[i]

    A(f"s_lshl_b32 {s(sKXL)}, {W}, 11")
    A(f"s_add_u32 {s(sKXL)}, {s(sKXL)}, {L_KX}")
    A(f"s_mov_b32 {s(sCSC+1)}, {s(sCSC)}")
    A(f"s_lshl_b32 {s(sT0)}, {W}, 10")
    A(f"s_add_u32 {s(sKM)}, {s(sT0)}, {s(sKVM)}")
    A(f"s_lshl_b32 {s(sT0)}, {W}, 9")
    A(f"s_add_u32 {s(sVM)}, {s(sT0)}, {s(sKVM)}")
    A(f"s_add_u32 {s(sVM)}, {s(sVM)}, 4096")
    A(f"s_mov_b32 {s(sONE)}, 0x3f803f80")
    A(f"s_mov_b32 {s(sONE+1)}, 0x3f803f80")
    A(f"s_lshl_b32 {s(sXO)}, {W}, 8")
    A("v_and_b32 v16, 4, v0")
    A("v_cmp_eq_u32 vcc, 0, v16")
    A("v_mov_b32 v17, 0x3f80")
    A("v_mov_b32 v18, 0x3f800000")
    A(f"v_cndmask_b32 {v(vSEL)}, v18, v17, vcc")
    A("v_and_b32 v16, 11, v0")
    for r in range(4):
        A(f"v_cmp_eq_u32 {s(sSELM+2*r,2)}, {8*(r>>1) + (r&1)}, v16")
    A(f"v_lshlrev_b32 v0, 3, v0")
    T0, T1, T2 = RS_, RS_ + 4, RS_ + 8
    G, SEL, H0, WT = RA + 24, T0, T1, vFLAG
    M, M2 = RT, RT + 1
    lg = lambda n: f"s_waitcnt lgkmcnt({n})"
    def kwr(i, hb):
        base, off = (vWA, i * 8192) if i < 8 else (vWB, (i - 8) * 8192)
        return f"ds_read_b128 {v(kbuf(i)+4*hb,4)}, {v(base)} offset:{off + hb*1024}"
    zero_acc = [f"v_mov_b64 {v(r,2)}, 0" for r in range(RK, RV + 8, 2)]
    kpre = [kwr(i, hb) for i in range(8) for hb in range(2)]
    def step_scalars():
        A(f"s_add_u32 {s(sVX)}, {s(sKVX)}, 8192")
        A(f"s_add_u32 {s(sTC2)}, {s(sKVX)}, {s(sTCH)}")
        if 'nokvx' not in OPT: A(f"s_add_u32 {s(sKVX)}, {s(sKVX)}, 0x80000")
        A(f"s_add_u32 {s(sFL)}, {s(sSTEP)}, 2")
        A(f"s_and_b32 {s(sFS)}, {s(sFL)}, 3")
        A(f"s_lshl_b32 {s(sFS)}, {s(sFS)}, 3")
        A(f"s_and_b32 {s(sFL)}, {s(sFL)}, 60")
    def dma2(soff):
        return [f"buffer_load_dwordx4 {v(vL16)}, {s(SWS,4)}, {s(soff)} offen sc1 lds",
                f"buffer_load_dwordx4 {v(vL16)}, {s(SWS,4)}, {s(soff)} offen offset:1024 sc1 lds"]
    def pol2(soff):
        return [f"buffer_load_dwordx4 {v(vP)}, {s(SWS,4)}, {s(soff)} offen sc1 lds",
                f"buffer_load_dwordx4 {v(vP)}, {s(SWS,4)}, {s(soff+1)} offen offset:1024 sc1 lds"]
    cr = lambda a_: [f"ds_read_b128 {v(RA+8*a_+4*b,4)}, {v(vL16)} offset:{L_MEM + a_*2048 + b*1024}" for b in range(2)]
    def chk(R, exact=False):
        o = [f"v_max3_u32 {v(WT)}, {v(R)}, {v(R+1)}, {v(R+2)}", f"v_max3_u32 {v(WT)}, {v(WT)}, {v(R+3)}, {v(R+4)}",
             f"v_max3_u32 {v(WT)}, {v(WT)}, {v(R+5)}, {v(R+6)}"]
        if exact: return o + [f"v_max_u32 {v(WT)}, {v(WT)}, {v(R+7)}", f"v_cmp_eq_u32 vcc, {SENT}, {v(WT)}"]
        return o + [f"v_cmp_u_f32 vcc, {v(WT)}, {v(R+7)}"]
    def watch(name, lok, R, body):
        A.label(name)
        for b_ in body:
            for x in chk(R) + b_: A(x)
            A(f"s_cbranch_vccz {lok}")
        A(f"s_sub_u32 {s(sBD2)}, {s(sBD2)}, 1")
        A(f"s_cbranch_scc0 {name}")
        A(f"s_movk_i32 {s(sBD2)}, 32")
        for x in chk(R, True) + body[0]: A(x)
        A(f"s_cbranch_vccz {lok}")
        A(f"s_sub_u32 {s(sBUD)}, {s(sBUD)}, 64")
        A(f"s_cbranch_scc0 {name}")
        A(f"s_mov_b32 {s(sBUD)}, 0")
        A(f"s_branch {lok}")
    kv_wait(0)
    A(f"s_mov_b32 m0, {s(sKXL)}")
    k_dma(sKVX)
    A(f"s_mov_b32 {s(sSTEP)}, -1")
    kv_wait(2)
    A(f"s_mov_b32 {s(sSTEP)}, 0")
    A(f"s_xor_b32 {s(sH1R)}, {s(sH1L)}, 0x40000")
    step_scalars()
    A(f"s_lshl_b32 {s(sM0P)}, {W}, 11")
    A(f"s_add_u32 {s(sH2P)}, {s(sH2)}, {s(sCLS)}")
    A(f"s_add_u32 {s(sH2P+1)}, {s(sH2P)}, 1024")
    A(f"s_add_u32 {s(sH2+1)}, {s(sH2)}, 1024")
    A(f"s_mov_b32 m0, {s(sM0P)}")
    for x in pol2(sH2P): A(x)
    A(f"s_cmp_eq_u32 {W}, 0")
    A(f"s_cselect_b32 {s(sM0P)}, 0x1800, {s(sM0P)}")
    A(f"s_cselect_b32 {s(sT0)}, 0x1080, {s(sCLS)}")
    A(f"s_add_u32 {s(sH2P)}, {s(sH2)}, {s(sT0)}")
    A(f"s_add_u32 {s(sH2P+1)}, {s(sH2P)}, 1024")
    A(f"s_lshr_b32 {s(sARM)}, {H}, 3")
    A(f"s_xor_b32 {s(sARM)}, {s(sARM)}, {W}")
    A(f"s_lshl_b32 {s(sARM)}, {s(sARM)}, 11")
    if 'c0only' in OPT: A(f"s_cselect_b32 {s(sARM)}, 13312, 0")
    A(f"s_mov_b32 {s(sX2)}, 0x2000")
    A(f"s_mov_b32 {s(sX2+1)}, 0x2000")
    A(f"s_movk_i32 {s(sBD2)}, 32")
    A("s_waitcnt vmcnt(0) lgkmcnt(0)")
    A("s_barrier")
    for x in kpre + zero_acc + cr(0): A(x)
    if prof:
        A("s_memtime s[16:17]")
        A("s_memrealtime s[46:47]")
        A("s_waitcnt lgkmcnt(0)")
        A("s_mov_b32 s48, s16"); A("s_mov_b32 s49, s46"); A("s_mov_b32 s50, 0"); A("s_mov_b32 s51, 0")
    A(lg(0))
    A.label("L_p2ok")
    stamp(0)
    def mq(t, j): smf(RQ + 4*t, v(RA+4*j,4), rtxt(team_opnd('Q', t, j),0,8))
    def mk(t, j):
        loc = team_opnd('K', t, j)
        smf(RK + 4*t, v(RA+4*j,4), rtxt(loc,0,8) if loc else v(kbuf(2*j+t),8))
    def mv(t, j): smf(RV + 4*t, v(RA+4*j,4), rtxt(team_opnd('V', t, j),0,8))
    def run(ms, gaps):
        for i, (f_, t_, j_) in enumerate(ms):
            f_(t_, j_)
            for x in gaps.get(i, ()): A(x)
        assert all(k < len(ms) for k in gaps)
    qk = lambda j: [(mq, 0, j), (mk, 0, j), (mq, 1, j), (mk, 1, j)]
    vv = lambda j: [(mv, 0, j), (mv, 1, j)]
    kx = [f"ds_read_b128 {v(RKX+4*i,4)}, {v(vL16)} offset:{L_KX + i*1024}" for i in range(8)]
    def comb(t):
        return [f"v_add_f32 {v(RQ+4*t)}, {v(RQ+4*t)}, {v(RQ+4*t+2)}", f"v_add_f32 {v(RQ+4*t+1)}, {v(RQ+4*t+1)}, {v(RQ+4*t+3)}",
                f"v_add_f32 {v(RK+4*t)}, {v(RK+4*t)}, {v(RK+4*t+2)}", f"v_add_f32 {v(RK+4*t+1)}, {v(RK+4*t+1)}, {v(RK+4*t+3)}",
                f"v_cvt_pk_bf16_f32 {v(RK+4*t)}, {v(RK+4*t)}, {v(RK+4*t+1)}",
                f"v_cvt_pk_bf16_f32 {v(RK+4*t+1)}, {v(RQ+4*t)}, {v(RQ+4*t+1)}",
                f"ds_write_b64 {v(vQKW)}, {v(RK+4*t,2)} offset:{t*128}"]
    c0, c1 = comb(0), comb(1)
    g = {i: [] for i in range(41)}
    own = pol2(sH2P)
    g[0] += [f"s_mov_b32 m0, {s(sM0P)}"]; g[1] += [own[0]]; g[2] += [own[1]]
    def validate(a_, rd, wt, n_after, br):
        c = chk(RA + 8*a_)
        g[rd] += [cr(a_)[0]]; g[rd+1] += [cr(a_)[1]]
        g[wt] += [lg(n_after), c[0]]; g[wt+1] += [c[1]]; g[wt+2] += [c[2], c[3]] if br - wt < 5 else [c[2]]
        if br - wt >= 5: g[wt+3] += [c[3]]
        g[br] += [f"s_cbranch_vccnz L_slow{a_}", f"L_back{a_}:"]
    validate(1, C1R, 7, 0, 11)
    g[8] = [kwr(8, 0)] + g[8]
    g[10] += [kwr(8, 1)]
    validate(2, 12, 16, 2, 19)
    g[14] += [cr(3)[0]]; g[15] += [cr(3)[1]]
    g[17] = [kwr(9, 0)] + g[17]; g[18] = [kwr(9, 1)] + g[18]
    c = chk(RA + 24)
    g[20] += [kwr(10, 0), c[0]]; g[21] += [kwr(10, 1), c[1]]; g[22] += [lg(2), c[2]]; g[23] += [kwr(11, 0), c[3]]
    g[19] = [lg(2)] + g[19]
    g[24] += [kwr(11, 1), lg(2)]
    g[25] += ["s_cbranch_vccnz L_slow3", "L_back3:", f"v_lshlrev_b32 {v(vFLAG)}, 2, {v(vL16)}"]
    g[5] += [f"buffer_load_dwordx4 {v(RVX,4)}, {v(vL16)}, {s(SWS,4)}, {s(sVX)} offen sc1"]
    g[6] += [f"buffer_load_dwordx4 {v(RVX+4,4)}, {v(vL16)}, {s(SWS,4)}, {s(sVX)} offen offset:1024 sc1"]
    g[13] += ["s_waitcnt vmcnt(8)"]
    g[26] += [f"buffer_load_dword {v(vFLAG)}, {v(vFLAG)}, {s(SWS,4)}, {s(sTC2)} offen sc1", lg(0)]
    g[27] += [f"buffer_load_dword {v(vFLAG)}, off, {s(SDBG,4)}, {s(sFL)} offset:{DBG_KV*4} sc1"]
    for i in range(8): g[28+i] += [kx[i]]
    g[29] += [f"v_mov_b64 {v(RT,2)}, -1"]; g[30] += [f"v_mov_b64 {v(RT+2,2)}, -1"]
    g[32] += [c0[0]]; g[33] += [c0[1]]; g[34] += [c0[2]]; g[35] += [c0[3]]
    g[36] += [c0[4], c0[5]]; g[37] += [c0[6]] + c1
    g[38] += [f"buffer_store_dwordx4 {v(RT,4)}, {v(vP)}, {s(SWS,4)}, {s(sH1R)} offen"]
    g[39] += [f"buffer_store_dwordx4 {v(RT,4)}, {v(vP)}, {s(SWS,4)}, {s(sH1R)} offen offset:2048"]
    g[40] += ["s_waitcnt vmcnt(4) lgkmcnt(0)", "s_barrier"]
    if 'c0only' in OPT:
        for k_ in g: g[k_] = [x for x in g[k_] if not x.startswith("s_cbranch_vccnz L_slow") and x not in own]
    run(qk(0) + qk(1) + vv(0) + vv(1) + qk(2) + qk(3) + qk(4) + qk(5) +
        [(mq,0,6),(mk,0,6),(mq,0,7),(mk,0,7),(mq,1,6),(mk,1,6),(mq,1,7),(mk,1,7)] + vv(2) + vv(3) + [(mv,0,4)], g)
    stamp(1)
    stamp(2)
    xr = [f"ds_read_b64_tr_b16 {v(RX+4*ks+2*q,2)}, {v(vXR)} offset:{(32*ks+16*q)*8}" for ks in range(4) for q in range(2)]
    A(xr[0]); A(xr[1])
    g = {i: [xr[2+i]] for i in range(6)}
    g[0].append(f"v_add_u32 {v(T1)}, {s(sXO)}, {v(vXR)}")
    g[5].append(f"s_mov_b32 m0, {s(sKXL)}")
    g[6] = [f"ds_read_b64_tr_b16 {v(RA,2)}, {v(T1)}", lg(5)]
    run([(mv,1,4)] + vv(5) + vv(6) + vv(7), g)
    stamp(3)
    O0, O1, LL = RX + 8, RX + 12, T2
    ONE, PM = RKX, RKX + 4
    obuf = lambda i: (RA + 8 + 8*i) if i < 3 else RKX + 8
    wo = [f"ds_read_b128 {v(obuf(i)+4*hb,4)}, {v(vWB)} offset:{(4+i)*8192 + hb*1024}" for i in range(4) for hb in range(2)]
    def ms(T, ks):
        aop = {T2: RX + 4*ks, T0: RKX + 4*ks, T1: RKX + 16 + 4*ks}[T]
        mf(T, aop, RX + 4*ks, "0" if ks == 0 else v(T,4))
    kd = dma2(sKVX)
    g = {0: [f"ds_read_b64_tr_b16 {v(RA+2,2)}, {v(T1)} offset:128"],
         1: [lg(4), f"v_add_f32 {v(RV)}, {v(RV)}, {v(RV+2)}", f"v_add_f32 {v(RV+1)}, {v(RV+1)}, {v(RV+3)}"],
         2: [lg(2), f"v_add_f32 {v(RV+4)}, {v(RV+4)}, {v(RV+6)}", f"v_add_f32 {v(RV+5)}, {v(RV+5)}, {v(RV+7)}"],
         3: [kd[0], f"v_cvt_pk_bf16_f32 {v(RA+4)}, {v(RV)}, {v(RV+1)}"],
         4: [kd[1], f"v_cvt_pk_bf16_f32 {v(RA+5)}, {v(RV+4)}, {v(RV+5)}"],
         5: [f"buffer_store_dwordx2 {v(RA+4,2)}, v0, {s(SWS,4)}, {s(sVM)} offen sc1", f"v_mov_b32 {v(RV)}, {v(RA+4)}"],
         6: [lg(0), f"buffer_store_dwordx4 {v(RA,4)}, {v(vL16)}, {s(SWS,4)}, {s(sKM)} offen sc1"],
         7: [f"s_cmp_eq_u32 {s(sSTEP)}, {nsteps-1}", f"v_mov_b32 {v(RV+4)}, {v(RA+5)}", f"v_mov_b32 {v(RV+1)}, 0"],
         8: ["s_cbranch_scc1 L_team_done", f"v_mov_b64 {v(RV+2,2)}, 0"],
         9: [wo[0], f"v_mov_b32 {v(RV+5)}, 0"],
         10: [wo[1], f"v_mov_b64 {v(RV+6,2)}, 0"],
         11: [f"v_max3_f32 {v(M)}, {v(T2)}, {v(T2+1)}, {v(T0)}", f"v_max3_f32 {v(M2)}, {v(T0+1)}, {v(T0+2)}, {v(T0+3)}",
              f"v_mov_b64 {v(ONE,2)}, {s(sONE,2)}", f"v_mov_b64 {v(ONE+2,2)}, {s(sONE,2)}",
              f"v_mov_b32 {v(PM+1)}, 0", f"v_mov_b64 {v(PM+2,2)}, 0", f"v_max_f32 {v(M)}, {v(M)}, {v(M2)}"]}
    if 'nopub' in OPT:
        g[5] = [x.replace(" sc1", "") for x in g[5]]; g[6] = [x.replace(" sc1", "") for x in g[6]]
    run([(ms, T, ks) for T in (T2, T0, T1) for ks in range(4)], g)
    stamp(4)
    A(f"v_max3_f32 {v(M)}, {v(M)}, {v(T1)}, {v(T1+1)}")
    A(f"v_max3_f32 {v(M2)}, {v(M)}, {v(T1+2)}, {v(T1+3)}")
    A(f"v_max3_f32 {v(M)}, {v(M)}, {v(T1+2)}, {v(T1+3)}")
    A(f"v_permlane32_swap_b32 {v(M)}, {v(M2)}")
    A(f"v_max_f32 {v(RT+3)}, {v(M)}, {v(M2)}")
    A(f"v_max_f32 {v(M)}, {v(M)}, {v(M2)}")
    A(f"v_permlane16_swap_b32 {v(M)}, {v(RT+3)}")
    A(f"v_max_f32 {v(M)}, {v(M)}, {v(RT+3)}")
    A(f"v_mul_f32 {v(M)}, {s(sCSC)}, {v(M)}")
    def pkf(r): A(f"v_pk_fma_f32 {v(r,2)}, {v(r,2)}, {s(sCSC,2)}, {v(M,2)} op_sel_hi:[1,1,0] neg_lo:[0,0,1] neg_hi:[0,0,1]")
    for r in (T2, T0, T0+2, T1, T1+2): pkf(r)
    ex = lambda r: A(f"v_exp_f32 {v(r)}, {v(r)}")
    ex(T2); ex(T2+1); ex(T0)
    A(f"v_cvt_pk_bf16_f32 {v(PM)}, {v(T2)}, {v(T2+1)}")
    ex(T0+1); ex(T0+2)
    mf(O0, RV, PM, "0")
    A(wo[2])
    ex(T0+3)
    mf(O1, RV+4, PM, "0")
    A(wo[3])
    ex(T0+4)
    mf(LL, ONE, PM, "0")
    ex(T0+5)
    A(f"v_cvt_pk_bf16_f32 {v(T0)}, {v(T0)}, {v(T0+1)}")
    ex(T0+6)
    A(f"v_cvt_pk_bf16_f32 {v(T0+1)}, {v(T0+2)}, {v(T0+3)}")
    ex(T0+7)
    A(f"v_cvt_pk_bf16_f32 {v(T0+2)}, {v(T0+4)}, {v(T0+5)}")
    A(f"v_cvt_pk_bf16_f32 {v(T0+3)}, {v(T0+6)}, {v(T0+7)}")
    stamp(5)
    oacc = [RV, RV + 4, RX, RX + 4]
    zl = [f"v_mov_b64 {v(r+h,2)}, 0" for r in oacc for h in (0, 2)]
    A(zl.pop(0)); A(zl.pop(0))
    mf(LL, ONE, T0, v(LL,4))
    A(wo[4]); A(zl.pop(0))
    mf(O0, RVX, T0, v(O0,4))
    A(wo[5]); A(zl.pop(0))
    mf(O1, RVX+4, T0, v(O1,4))
    A(wo[6])
    DUP = "quad_perm:[2,3,2,3] row_mask:0xf bank_mask:0xf"
    A(f"v_rcp_f32_dpp {v(M)}, {v(LL)} {DUP}")
    A(zl.pop(0)); A(zl.pop(0))
    for r in range(O0, O0 + 4): A(f"v_mul_f32_dpp {v(r)}, {v(r)}, {v(M)} {DUP}")
    A(f"v_cvt_pk_bf16_f32 {v(O0)}, {v(O0)}, {v(O0+1)}")
    A(f"v_cvt_pk_bf16_f32 {v(O0+1)}, {v(O0+2)}, {v(O0+3)}")
    for r in range(O1, O1 + 4): A(f"v_mul_f32_dpp {v(r)}, {v(r)}, {v(M)} {DUP}")
    A(f"v_cvt_pk_bf16_f32 {v(O0+2)}, {v(O1)}, {v(O1+1)}")
    A(f"v_cvt_pk_bf16_f32 {v(O0+3)}, {v(O1+2)}, {v(O1+3)}")
    A(f"ds_write_b128 {v(vMW)}, {v(O0,4)} offset:{L_O}")
    stamp(6)
    OA = [O0, O1, RVX, RVX + 4]
    def mo(a_, i):
        loc = team_opnd('O', a_, i)
        smf(oacc[a_], v(OA[i],4), rtxt(loc,0,8) if loc else v(obuf(OSEQ.index((a_, i))),8))
    oar = [f"ds_read_b128 {v(OA[p],4)}, {v(r)} offset:{L_O}" for p, r in ((1, vMR1), (2, vMR2), (3, vMR3))]
    def o_fin(a_):
        x = oacc[a_]
        return [f"v_cvt_pk_bf16_f32 {v(x)}, {v(x)}, {v(x+1)}",
                f"v_cvt_pk_bf16_f32 {v(x+1)}, {v(x+2)}, {v(x+3)}",
                f"buffer_store_dwordx2 {v(x,2)}, {v(vH1S)}, {s(SWS,4)}, {s(sH1S0+(a_>>1))} offen offset:{(a_&1)*128}"]
    arm = lambda R: [f"v_mov_b64 {v(R+i,2)}, -1" for i in range(0, 8, 2)]
    sl = [f"v_cndmask_b32 {v(SEL+i)}, 0, {v(vSEL)}, {s(sSELM+2*i,2)}" for i in range(4)]
    DSC = '' if 'plaindma' in OPT else 'sc1'
    A(lg(2))
    ag, aa = arm(G), arm(RA)
    f0, f1, f2, f3 = o_fin(0), o_fin(1), o_fin(2), o_fin(3)
    g = {0: [wo[7], zl[0]], 1: [zl[1], aa[0]], 2: [aa[1], f"v_add_u32 {v(M2)}, {s(sARM)}, {v(vL16)}", lg(0), "s_barrier"] + oar,
         3: [f"ds_write_b128 {v(M2)}, {v(RA,4)} offset:{L_MEM}", f"ds_write_b128 {v(M2)}, {v(RA,4)} offset:{L_MEM+1024}", ag[0], ag[1], lg(4)],
         4: [lg(3), ag[2]], 5: [lg(2), ag[3]], 6: [sl[0]], 7: [lg(0), sl[1]], 8: [f0[0], f0[1]], 9: [f0[2], sl[2]], 10: [sl[3]],
         11: [f1[0]], 12: [f1[1]], 13: [f1[2], aa[2]], 14: [f2[0]], 15: [f2[1], f2[2], aa[3]] + f3}
    if 'c0only' in OPT:
        for k_ in g: g[k_] = [x for x in g[k_] if x not in (f1[2], f2[2], f3[2])]
    run([(mo, a_, i) for a_, i in OSEQ], g)
    stamp(7)
    p1l = [f"buffer_load_dwordx4 {v(G+4*i,4)}, {v(vP)}, {s(SWS,4)}, {s(sH1L)} offen offset:{i*2048} sc1" for i in range(2)]
    spec1 = [f"v_mfma_f32_16x16x32_bf16 {v(H0,4)}, {v(SEL,4)}, {v(G,4)}, 0",
             f"v_mfma_f32_16x16x32_bf16 {v(H0,4)}, {v(SEL,4)}, {v(G+4,4)}, {v(H0,4)}"]
    def tail(wv):
        s1, s2, n1, n2 = SCHED[wv]
        keep = f"v_mov_b32 {v(WT)}, 0"
        if 'c0only' in OPT and wv: s1 = 0
        A("s_waitcnt vmcnt(3)" if 'c0only' in OPT else "s_waitcnt vmcnt(6)")
        work = []
        for i in range(12): work.append([kpre[i], zero_acc[i]])
        work[9] += [f"v_bfe_u32 {v(vFLAG)}, {v(vFLAG)}, {s(sFS)}, 8", f"v_cmp_le_u32 vcc, 32, {v(vFLAG)}"]
        for i, wk in enumerate(work):
            if s1 >> i & 1:
                A(p1l[0]); A(p1l[1])
            for x in wk: A(x)
        A(f"s_cbranch_vccz L_kvslow{wv}")
        A.label(f"L_kvback{wv}")
        A(f"s_xor_b64 {s(sH2,2)}, {s(sH2,2)}, {s(sX2,2)}")
        A(f"s_xor_b64 {s(sH2P,2)}, {s(sH2P,2)}, {s(sX2,2)}")
        A(f"s_xor_b32 {s(sT0)}, {s(sH2N)}, 0x2000")
        stamp(8)
        if 'c0only' in OPT and wv: A(f"s_branch L_p1ok_{wv}")
        watch(f"L_p1_{wv}", f"L_p1ok_{wv}", G, [spec1 + p1l] + [spec1] * (n1 - 1))
        A.label(f"L_p1ok_{wv}")
        stamp(9)
        A("s_nop 6")
        ROR = lambda n: f"row_ror:{n} row_mask:0xf bank_mask:0xf"
        A(f"v_add_f32_dpp {v(H0)}, {v(H0)}, {v(H0)} {ROR(8)}")
        A(f"v_add_f32_dpp {v(H0+1)}, {v(H0+1)}, {v(H0+1)} {ROR(8)}")
        A(f"s_mov_b32 {s(sH1R)}, {s(sH1L)}")
        A(f"v_add_f32_dpp {v(H0)}, {v(H0)}, {v(H0)} {ROR(4)}")
        A(f"v_add_f32_dpp {v(H0+1)}, {v(H0+1)}, {v(H0+1)} {ROR(4)}")
        A(f"v_cvt_pk_bf16_f32 {v(H0)}, {v(H0)}, {v(H0+1)}")
        A(f"buffer_store_dword {v(H0)}, {v(vH2S)}, {s(SWS,4)}, {s(sH2N)} offen")
        stamp(10)
        A(f"buffer_store_dword {v(RA)}, {v(vH2S)}, {s(SWS,4)}, {s(sT0)} offen")
        pol = pol2(sH2 if wv == 0 else sH2P)
        if 'c0only' in OPT and wv: pol = ["s_nop 0", "s_nop 0"]
        A("s_mov_b32 m0, 0" if wv == 0 else f"s_mov_b32 m0, {s(sM0P)}")
        sc = [f"s_mov_b32 {s(sH2N)}, {s(sT0)}", f"s_xor_b32 {s(sH1L)}, {s(sH1L)}, 0x40000",
              f"s_xor_b32 {s(sH1S0)}, {s(sH1S0)}, 0x40000", f"s_xor_b32 {s(sH1S0+1)}, {s(sH1S0+1)}, 0x40000",
              f"s_add_u32 {s(sKM)}, {s(sKM)}, {0 if 'nokvm' in OPT else 0x40000}", f"s_add_u32 {s(sVM)}, {s(sVM)}, {0 if 'nokvm' in OPT else 0x40000}",
              f"s_add_u32 {s(sSTEP)}, {s(sSTEP)}, 1"]
        work = [[kpre[12], sc[0], sc[1], keep], [kpre[13], sc[2], sc[3], keep], [kpre[14], sc[4], sc[5], keep], [kpre[15], sc[6], keep]]
        for i, wk in enumerate(work):
            if s2 >> i & 1:
                A(pol[0]); A(pol[1])
            for x in wk: A(x)
        step_scalars()
        if s2 >> 4 & 1:
            A(pol[0]); A(pol[1])
        stamp_end(11)
        watch(f"L_p2_{wv}", "L_p2ok", RA, [cr(0) + pol] + [cr(0)] * (n2 - 1))
    A(f"s_cmp_eq_u32 {W}, 0")
    A("s_cbranch_scc0 L_tail123")
    tail(0)
    A.label("L_tail123")
    tail(1)
    for wv in (0, 1):
        A.label(f"L_kvslow{wv}")
        kv_wait(2)
        A(f"s_branch L_kvback{wv}")
    for a_ in (1, 2, 3):
        A.label(f"L_slow{a_}")
        if prof and 'abs' not in OPT: A(f"s_add_u32 {s(sPROF+11)}, {s(sPROF+11)}, {1 << (8*(a_-1))}")
        A(f"s_movk_i32 m0, {L_MEM + a_*2048}")
        A(f"s_add_u32 {s(sT2)}, {s(sH2)}, {(a_>>1)*4096 + (a_&1)*128}")
        A(f"s_add_u32 {s(sT3)}, {s(sT2)}, 1024")
        A.label(f"L_slowl{a_}")
        for rep in range(3):
            for x in cr(a_): A(x)
            A(lg(0))
            for x in chk(RA + 8*a_, True): A(x)
            A("s_nop 1")
            A(f"s_cbranch_vccz L_back{a_}")
            if rep == 0:
                for x in pol2(sT2): A(x)
        A(f"s_sub_u32 {s(sBUD)}, {s(sBUD)}, 1")
        A(f"s_cbranch_scc0 L_slowl{a_}")
        A(f"s_mov_b32 {s(sBUD)}, 0")
        A(f"s_branch L_back{a_}")
    A.label("L_team_done")
    if prof:
        A(f"s_lshl_b32 {s(sT0)}, {H}, 2")
        A(f"s_add_u32 {s(sT0)}, {s(sT0)}, {W}")
        A(f"s_lshl_b32 {s(sT0)}, {s(sT0)}, 7")
        A(f"s_add_u32 {s(sT0)}, {s(sT0)}, {WS_PROF}")
        A("v_mov_b32 v16, 0")
        A("s_memrealtime s[38:39]")
        A("s_waitcnt lgkmcnt(0)")
        for i, r in enumerate((44, 46, 48, 49, 50, 51, 38, 4)): A(f"s_mov_b32 {s(sPROF+12+i)}, s{r}")
        for i in range(20):
            A(f"v_mov_b32 v17, {s(sPROF+i)}")
            A(f"buffer_store_dword v17, v16, {s(SWS,4)}, {s(sT0)} offen offset:{4*i}")
    A("s_waitcnt vmcnt(0)")
    A("s_endpgm")

def build(prof=False, team_only=False):
    A = Asm()
    prologue(A)
    A(f"s_cmp_eq_u32 {s(sXCC)}, 0")
    A("s_cbranch_scc1 L_team")
    if team_only:
        A("s_endpgm")
    else:
        import worker
        worker.worker(A, sys.modules[__name__])
    team(A, prof=prof)
    A.label("L_end")
    A("s_endpgm")
    body = A.finish()
    hdr = open("cdna_kernels/" + NAME + ".s.ref").read().split("; Override launch")[0]
    txt = hdr + f"""; @launch grid=(256,1,1) block=(256,1,1) lds=163840
.amdgcn_target "amdgcn-amd-amdhsa--gfx950"
.text
.globl {KN}
.p2align 8
.type {KN},@function
{KN}:
{body}.section .rodata,"a"
.p2align 6
.amdhsa_kernel {KN}
  .amdhsa_next_free_vgpr 512
  .amdhsa_next_free_sgpr 102
  .amdhsa_accum_offset 256
  .amdhsa_group_segment_fixed_size 0
  .amdhsa_kernarg_size 112
  .amdhsa_user_sgpr_count 2
  .amdhsa_user_sgpr_kernarg_segment_ptr 1
  .amdhsa_system_sgpr_workgroup_id_x 1
  .amdhsa_float_denorm_mode_32 3
.end_amdhsa_kernel
"""
    return txt

if __name__ == "__main__":
    out = sys.argv[1]
    txt = build(prof="prof" in sys.argv[2:], team_only="team" in sys.argv[2:])
    open(out, "w").write(txt)
```

```python
from asmlib import *

def worker(A, G):
    g_ = G.__dict__
    (SX, SWS, SDBG, SWQ, SWK, SWV, SWO, SWG, SWU, SWD, SOUT) = [g_[k] for k in
        "SX SWS SDBG SWQ SWK SWV SWO SWG SWU SWD SOUT".split()]
    sT0, sT1, sT2, sT3, sBUD = G.sT0, G.sT1, G.sT2, G.sT3, G.sBUD
    W, H, X = s(G.sWAVE), s(G.sRANK), s(G.sXCC)
    ISTR, SENT = G.ISTR, G.SENT
    sREP, sSEG, sBUF, sRSB, sA, sB, sC, sD, sHM, sCS = 60, 61, 62, 63, 64, 65, 66, 67, 68, 70
    sRO = 72
    sE, sF = 80, 81
    vL16, vR16, vG, vL8 = 2, 3, 4, 5
    lg = lambda n: f"s_waitcnt lgkmcnt({n})"
    L_XT, L_OI = 98304, 0
    def mf(d, aop, bop, c): A(f"v_mfma_f32_16x16x32_bf16 {d}, {aop}, {bop}, {c}")
    def seg_loop(name, body):
        A(f"s_mov_b32 {s(sSEG)}, {s(sREP)}")
        A.label(name)
        body()
        A(f"s_add_u32 {s(sSEG)}, {s(sSEG)}, 7")
        A(f"s_cmp_lt_u32 {s(sSEG)}, 64")
        A(f"s_cbranch_scc1 {name}")

    tl = 'tl' in G.OPT
    def wst(k):
        if not tl: return
        A("s_memrealtime s[84:85]")
        A("s_waitcnt lgkmcnt(0)")
        A("v_mov_b32 v15, s84")
        A(f"buffer_store_dword v15, off, {s(SWS,4)}, s86 offset:{4*k}")
    def wst_seg(k):
        if not tl: return
        A("s_memrealtime s[84:85]")
        A(f"s_lshl_b32 s87, {s(sSEG)}, 2")
        A("s_add_u32 s87, s87, s86")
        A("s_waitcnt lgkmcnt(0)")
        A("v_mov_b32 v15, s84")
        A(f"buffer_store_dword v15, off, {s(SWS,4)}, s87 offset:{256*k}")
    A.label("L_worker")
    if tl:
        A(f"s_lshl_b32 s86, {X}, 5")
        A(f"s_add_u32 s86, s86, {H}")
        A("s_lshl_b32 s86, s86, 2")
        A(f"s_add_u32 s86, s86, {W}")
        A("s_lshl_b32 s86, s86, 10")
        A(f"s_add_u32 s86, s86, {G.WS_PROF}")
        A("v_mov_b32 v15, s96")
        A(f"buffer_store_dword v15, off, {s(SWS,4)}, s86")
    A(f"s_sub_u32 {s(sREP)}, {X}, 1")
    A(f"v_lshlrev_b32 {v(vL16)}, 4, v0")
    A(f"v_and_b32 {v(vR16)}, 15, v0")
    A(f"v_lshrrev_b32 {v(vG)}, 4, v0")
    A(f"v_lshlrev_b32 {v(vL8)}, 3, v0")
    A(f"v_and_b32 v18, 1, {v(vG)}")
    A("v_lshlrev_b32 v25, 3, v18")
    A(f"v_xor_b32 v25, v25, {v(vR16)}")
    A("v_lshlrev_b32 v25, 4, v25")
    A(f"v_lshl_add_u32 v25, {v(vG)}, 16, v25")
    A(f"s_lshl_b32 {s(sT0)}, {W}, 20")
    A(f"s_lshl_b32 {s(sT1)}, {H}, 8")
    A(f"s_add_u32 {s(sT0)}, {s(sT0)}, {s(sT1)}")
    A(f"v_add_u32 v6, {s(sT0)}, v25")
    A("v_bfe_u32 v25, v0, 2, 2")
    A(f"v_mul_u32_u24 v25, {ISTR}, v25")
    A(f"v_lshl_add_u32 v25, {v(vG)}, 8, v25")
    A("v_and_b32 v26, 3, v0")
    A("v_lshlrev_b32 v27, 7, v18")
    A(f"s_lshl_b32 {s(sT0)}, {W}, 6")
    A(f"v_xor_b32 v27, {s(sT0)}, v27")
    A("v_lshl_add_u32 v27, v26, 3, v27")
    A("v_add_u32 v7, v27, v25")
    A(f"v_lshlrev_b32 v27, 12, {v(vG)}")
    A(f"v_lshl_add_u32 v27, {v(vR16)}, 4, v27")
    A(f"s_lshl_b32 {s(sT0)}, {W}, 8")
    A(f"v_add_u32 v8, {s(sT0)}, v27")
    A("v_lshl_add_u32 v27, v26, 3, v25")
    A(f"s_lshl_b32 {s(sT0)}, {W}, 10")
    A(f"v_add_u32 v9, {s(sT0)}, v27")
    A("v_bfe_u32 v27, v0, 3, 1")
    A(f"v_lshl_add_u32 v27, {v(vG)}, 3, v27")
    A(f"s_lshl_b32 {s(sT0)}, {W}, 7")
    A(f"v_add_u32 v27, {s(sT0)}, v27")
    A("v_mul_u32_u24 v27, 2752, v27")
    A("v_and_b32 v28, 7, v0")
    A("v_lshl_add_u32 v27, v28, 4, v27")
    A(f"s_lshl_b32 {s(sT0)}, {H}, 7")
    A(f"v_add_u32 v10, {s(sT0)}, v27")
    A("v_bfe_u32 v27, v0, 3, 1")
    A(f"v_mul_u32_u24 v27, {ISTR}, v27")
    A(f"v_lshl_add_u32 v27, {v(vG)}, 8, v27")
    A("v_bfe_u32 v28, v0, 2, 1")
    A("v_lshl_add_u32 v27, v28, 7, v27")
    A("v_lshl_add_u32 v27, v26, 3, v27")
    A(f"s_lshl_b32 {s(sT0)}, {W}, 5")
    A(f"v_add_u32 v11, {s(sT0)}, v27")
    A(f"v_lshlrev_b32 v27, 10, {v(vG)}")
    A(f"v_lshl_add_u32 v27, {v(vR16)}, 4, v27")
    A(f"s_lshl_b32 {s(sT0)}, {W}, 8")
    A(f"v_add_u32 v12, {s(sT0)}, v27")
    A(f"s_lshl_b32 {s(sRSB)}, {s(sREP)}, 21")
    A(f"s_add_u32 {s(sRSB)}, {s(sRSB)}, {G.WS_RS}")

    def proj_chunks(srd, tile0):
        out = []
        for b in range(2):
            for hb in range(2):
                for q in range(2):
                    reads = []
                    for p in range(4):
                        for t in range(2):
                            dst = a(((tile0 + t) * 16 + 4*p + 2*b + hb) * 4 + 2*q, 2)
                            reads.append(lambda R, dst=dst, p=p, t=t: f"ds_read_b64_tr_b16 {dst}, v7 offset:{R + p*1024 + t*32}")
                    out.append(dict(srd=srd, voff=6, soff=[(64*b + 32*hb + 4*q + rr) * 8192 for rr in range(4)], reads=reads))
        return out

    def init_work(A):
        A("v_lshrrev_b32 v36, 2, v0")
        A("v_lshlrev_b32 v36, 10, v36")
        A("v_and_b32 v37, 3, v0")
        A("v_lshl_add_u32 v36, v37, 8, v36")
        A(f"s_lshr_b32 {s(sA)}, {H}, 4")
        A(f"s_lshl_b32 {s(sA)}, {s(sA)}, 14")
        A(f"s_and_b32 {s(sB)}, {H}, 15")
        A(f"s_lshl_b32 {s(sB)}, {s(sB)}, 4")
        A(f"s_add_u32 {s(sC)}, {s(sA)}, {s(sB)}")
        A(f"s_mul_i32 {s(sSEG)}, {W}, 7")
        A(f"s_add_u32 {s(sSEG)}, {s(sSEG)}, {s(sREP)}")
        A(f"s_mov_b32 {s(sD)}, 0xffff0000")
        A("s_waitcnt vmcnt(16)")
        A.label("L_wk_ln")
        for i in range(4):
            A(f"v_mov_b32 {v(40+i)}, {v(60+i)}")
            A(f"v_mov_b32 {v(60+i)}, {v(64+i)}")
            A(f"v_mov_b32 {v(64+i)}, {v(68+i)}")
        for i in range(4):
            A(f"v_lshlrev_b32 {v(44+2*i)}, 16, {v(40+i)}")
            A(f"v_and_b32 {v(45+2*i)}, {s(sD)}, {v(40+i)}")
        def wsum(r, t):
            for n in (1, 2, 4, 8):
                A(f"v_add_f32_dpp {v(r)}, {v(r)}, {v(r)} row_ror:{n} row_mask:0xf bank_mask:0xf")
            for op in ("v_permlane16_swap_b32", "v_permlane32_swap_b32"):
                A(f"v_mov_b32 {v(t)}, {v(r)}")
                A(f"{op} {v(r)}, {v(t)}")
                A(f"v_add_f32 {v(r)}, {v(r)}, {v(t)}")
        A("v_add_f32 v52, v44, v45")
        for i in range(2, 8): A(f"v_add_f32 v52, v52, {v(44+i)}")
        wsum(52, 53)
        A("v_mul_f32 v52, 0x3b000000, v52")
        A("v_sub_f32 v54, v44, v52")
        A("v_mul_f32 v55, v54, v54")
        for i in range(1, 8):
            A(f"v_sub_f32 v54, {v(44+i)}, v52")
            A("v_fmac_f32 v55, v54, v54")
        wsum(55, 53)
        A("v_mul_f32 v55, 0x3b000000, v55")
        def rnd(r):
            A(f"v_cvt_pk_bf16_f32 {v(r)}, {v(r)}, {v(r)}")
            A(f"v_lshlrev_b32 {v(r)}, 16, {v(r)}")
        rnd(52); rnd(55)
        A("v_add_f32 v55, 0x3727c5ac, v55")
        rnd(55)
        A("v_sqrt_f32 v55, v55")
        rnd(55)
        A("v_rcp_f32 v55, v55")
        for i in range(4):
            A(f"v_sub_f32 {v(44+2*i)}, {v(44+2*i)}, v52")
            A(f"v_sub_f32 {v(45+2*i)}, {v(45+2*i)}, v52")
            A(f"v_cvt_pk_bf16_f32 {v(40+i)}, {v(44+2*i)}, {v(45+2*i)}")
            A(f"v_lshlrev_b32 {v(44+2*i)}, 16, {v(40+i)}")
            A(f"v_and_b32 {v(45+2*i)}, {s(sD)}, {v(40+i)}")
            A(f"v_mul_f32 {v(44+2*i)}, {v(44+2*i)}, v55")
            A(f"v_mul_f32 {v(45+2*i)}, {v(45+2*i)}, v55")
            A(f"v_cvt_pk_bf16_f32 {v(40+i)}, {v(44+2*i)}, {v(45+2*i)}")
        A(f"s_lshl_b32 {s(sA)}, {s(sSEG)}, 15")
        A(f"s_add_u32 {s(sA)}, {s(sA)}, {s(sC)}")
        A(f"buffer_store_dwordx4 v[40:43], v36, {s(SWS,4)}, {s(sA)} offen")
        A(f"s_add_u32 {s(sSEG)}, {s(sSEG)}, 28")
        A(f"s_cmp_lt_u32 {s(sSEG)}, 64")
        A("s_cbranch_scc1 L_wk_ln")
        A(f"s_lshl_b32 {s(sA)}, {s(sREP)}, 5")
        A(f"s_add_u32 {s(sA)}, {s(sA)}, {H}")
        A(f"s_lshl_b32 {s(sA)}, {s(sA)}, 2")
        A(f"s_add_u32 {s(sA)}, {s(sA)}, {W}")
        A(f"s_mul_i32 {s(sA)}, {s(sA)}, 5120")
        A(f"s_add_u32 {s(sB)}, {s(sA)}, 4096")
        for sr in (SWQ, SWO):
            for i in range(4): A(f"buffer_load_dwordx4 v[72:75], {v(vL16)}, {s(sr,4)}, {s(sA)} offen offset:{i*1024}")
            A(f"buffer_load_dwordx4 v[72:75], {v(vL16)}, {s(sr,4)}, {s(sB)} offen")
    def signal(word_soff, val):
        l = A.newlabel("sig")
        A(f"s_cmp_lg_u32 {W}, 0")
        A(f"s_cbranch_scc1 {l}")
        A(f"v_mov_b32 v13, {val}")
        A("s_mov_b64 exec, 1")
        A(f"buffer_atomic_add v13, off, {s(SDBG,4)}, {word_soff} sc1")
        A("s_mov_b64 exec, -1")
        A.label(l)
    def first(A):
        signal(f"{s(G.sDB)} offset:{G.DBG_INIT*4}", 1)
    def wait_ctr(name, soff, word):
        A.label(name)
        A(f"buffer_load_dword v13, off, {s(SDBG,4)}, {soff} offset:{word*4} sc1")
        A("s_waitcnt vmcnt(0)")
        A("v_cmp_le_u32 vcc, 32, v13")
        A(f"s_cbranch_vccnz {name}ok")
        A("s_sleep 2")
        G.poll_budget(A, name, name + "ok")
        A.label(name + "ok")

    chunks = proj_chunks(SWK, 0) + proj_chunks(SWV, 2)
    chunks[4]['first'] = first
    A(f"s_mul_i32 {s(sA)}, {W}, 7")
    A(f"s_add_u32 {s(sA)}, {s(sA)}, {s(sREP)}")
    A(f"s_lshl_b32 {s(sA)}, {s(sA)}, 5")
    A(f"s_add_u32 {s(sA)}, {s(sA)}, {H}")
    A(f"s_lshl_b32 {s(sA)}, {s(sA)}, 10")
    for i in range(3):
        A(f"buffer_load_dwordx4 {v(60+4*i,4)}, {v(vL16)}, {s(SX,4)}, {s(sA)} offen")
        A(f"s_add_u32 {s(sA)}, {s(sA)}, {28*32*1024}")
    A(f"s_lshl_b32 {s(sT0)}, {W}, 10")
    G.run_loader(A, chunks, after_prime=init_work)
    wst(1)
    wait_ctr("L_wk_iw", s(G.sDB), G.DBG_INIT)
    wait_ctr("L_wk_tw", "0", G.DBG_INIT)

    ACC, XF = 32, 64
    def xt_dma(segreg):
        A(f"s_lshl_b32 {s(sA)}, {segreg}, 15")
        A(f"s_lshl_b32 {s(sB)}, {W}, 13")
        A(f"s_add_u32 {s(sA)}, {s(sA)}, {s(sB)}")
        A(f"s_add_u32 {s(sB)}, {s(sB)}, {s(sBUF)}")
        for h2 in range(2):
            A(f"s_add_u32 m0, {s(sB)}, {h2*4096}")
            A(f"s_add_u32 {s(sC)}, {s(sA)}, {h2*4096}")
            for i in range(4):
                A(f"buffer_load_dwordx4 {v(vL16)}, {s(SWS,4)}, {s(sC)} offen offset:{i*1024} sc1 lds")
    def proj_pass(name, swap, epilogue, flag):
        A(f"s_mov_b32 {s(sBUF)}, {L_XT}")
        xt_dma(s(sREP))
        def body():
            A("s_waitcnt vmcnt(0)")
            A("s_barrier")
            if flag: flag_prev()
            if flag: wst_seg(1)
            A(f"v_add_u32 v14, {s(sBUF)}, {v(vL16)}")
            A(f"s_xor_b32 {s(sBUF)}, {s(sBUF)}, {L_XT ^ (L_XT + 32768)}")
            rd = lambda ks, rt: f"ds_read_b128 {v(XF + ((ks % 4)*2 + rt)*4, 4)}, v14 offset:{rt*16384 + ks*1024}"
            for ks in range(3):
                A(rd(ks, 0)); A(rd(ks, 1))
            A(f"s_add_u32 {s(sD)}, {s(sSEG)}, 7")
            A(f"s_min_u32 {s(sD)}, {s(sD)}, 63")
            xt_dma(s(sD))
            for ks in range(16):
                A(lg(4 if ks < 14 else (2 if ks == 14 else 0)))
                n = 0
                for rt in range(2):
                    for t in range(4):
                        d = v(ACC + (rt*4 + t)*4, 4)
                        wop, xop = a((t*16 + ks)*4, 4), v(XF + ((ks % 4)*2 + rt)*4, 4)
                        if t in swap: mf(d, xop, wop, "0" if ks == 0 else d)
                        else: mf(d, wop, xop, "0" if ks == 0 else d)
                        if n < 2 and ks + 3 < 16: A(rd(ks + 3, n))
                        n += 1
            epilogue()
        seg_loop(name, body)
        A("s_waitcnt vmcnt(0)")
        A("s_barrier")
        if flag: flag_prev()
    def flag_prev():
        l = A.newlabel("nf")
        A(f"s_sub_u32 {s(sA)}, {s(sSEG)}, 7")
        A(f"s_cbranch_scc1 {l}")
        A(f"s_cmp_lg_u32 {W}, 0")
        A(f"s_cbranch_scc1 {l}")
        A(f"s_lshl_b32 {s(sA)}, {s(sA)}, 2")
        A(f"s_lshl_b32 {s(sB)}, {H}, 8")
        A(f"s_add_u32 {s(sA)}, {s(sA)}, {s(sB)}")
        A(f"s_add_u32 {s(sA)}, {s(sA)}, {G.WS_FLG}")
        A("v_mov_b32 v13, 1")
        A("s_mov_b64 exec, 1")
        A(f"buffer_store_dword v13, off, {s(SWS,4)}, {s(sA)} sc1")
        A("s_mov_b64 exec, -1")
        A.label(l)
    def pack8(dst, x, y):
        A(f"v_cvt_pk_bf16_f32 {v(dst)}, {v(x)}, {v(x+1)}")
        A(f"v_cvt_pk_bf16_f32 {v(dst+1)}, {v(x+2)}, {v(x+3)}")
        A(f"v_cvt_pk_bf16_f32 {v(dst+2)}, {v(y)}, {v(y+1)}")
        A(f"v_cvt_pk_bf16_f32 {v(dst+3)}, {v(y+2)}, {v(y+3)}")
    acc = lambda rt, t: ACC + (rt*4 + t)*4
    def seghead(dst, shift, base):
        A(f"s_lshl_b32 {s(dst)}, {s(sSEG)}, 5")
        A(f"s_add_u32 {s(dst)}, {s(dst)}, {H}")
        A(f"s_lshl_b32 {s(dst)}, {s(dst)}, {shift}")
        A(f"s_add_u32 {s(dst)}, {s(dst)}, {base}")
    def epi1():
        seghead(sA, 14, G.WS_KVX)
        A(f"s_lshl_b32 {s(sB)}, {W}, 10")
        A(f"s_add_u32 {s(sB)}, {s(sB)}, {s(sA)}")
        A(f"s_add_u32 {s(sC)}, {s(sB)}, 4096")
        A(f"s_lshl_b32 {s(sD)}, {W}, 11")
        A(f"s_add_u32 {s(sD)}, {s(sD)}, {s(sA)}")
        A(f"s_add_u32 {s(sD)}, {s(sD)}, 8192")
        pack8(96, acc(0,0), acc(0,1))
        A(f"buffer_store_dwordx4 v[96:99], {v(vL16)}, {s(SWS,4)}, {s(sB)} offen sc1")
        pack8(100, acc(1,0), acc(1,1))
        A(f"buffer_store_dwordx4 v[100:103], {v(vL16)}, {s(SWS,4)}, {s(sC)} offen sc1")
        pack8(104, acc(0,2), acc(1,2))
        A(f"buffer_store_dwordx4 v[104:107], {v(vL16)}, {s(SWS,4)}, {s(sD)} offen sc1")
        pack8(108, acc(0,3), acc(1,3))
        A(f"buffer_store_dwordx4 v[108:111], {v(vL16)}, {s(SWS,4)}, {s(sD)} offen offset:1024 sc1")
        seghead(sA, 12, G.WS_KVM)
        A(f"s_lshl_b32 {s(sB)}, {W}, 10")
        A(f"s_add_u32 {s(sB)}, {s(sB)}, {s(sA)}")
        A(f"buffer_store_dwordx4 v[16:19], {v(vL16)}, {s(SWS,4)}, {s(sB)} offen sc1")
    for i in range(4): A(f"v_mov_b32 {v(16+i)}, {SENT}")
    proj_pass("L_wk_p1", (2, 3), epi1, True)
    A(f"s_lshl_b32 {s(sA)}, {H}, 15")
    A(f"s_add_u32 {s(sA)}, {s(sA)}, {s(sRSB)}")
    for sl in range(2):
        for i in range(8):
            A(f"s_add_u32 {s(sB)}, {s(sA)}, {sl*0x100000 + i*4096}")
            A(f"buffer_store_dwordx4 v[16:19], v12, {s(SWS,4)}, {s(sB)} offen")

    wst(2)
    chunks = proj_chunks(SWQ, 0)
    chunks[0]['first'] = lambda A: signal(f"{s(G.sDB)} offset:{G.DBG_RS*4}", 1)
    for b in range(2):
        for hb in range(2):
            for q in range(2):
                reads = []
                for p in range(4):
                    for m in range(2):
                        dst = a(((2 + m) * 16 + 4*p + 2*b + hb) * 4 + 2*q, 2)
                        reads.append(lambda R, dst=dst, p=p, m=m: f"ds_read_b64_tr_b16 {dst}, v11 offset:{R + p*1024 + 2*m*ISTR}")
                chunks.append(dict(srd=[SWG, SWG, SWU, SWU], voff=10,
                                   soff=[(64*b + 32*hb + 4*q + 2*(u & 1)) * 2752 for u in range(4)], reads=reads))
    A(f"s_lshl_b32 {s(sT0)}, {W}, 10")
    G.run_loader(A, chunks)
    wst(3)
    A(f"s_lshl_b32 {s(sA)}, {H}, 2")
    A(f"s_add_u32 {s(sA)}, {s(sA)}, {W}")
    A(f"s_cmp_lt_u32 {s(sA)}, 86")
    A(f"s_cselect_b32 {s(sHM)}, -1, 0")
    def epi2():
        seghead(sA, 13, G.WS_QX)
        A(f"s_lshl_b32 {s(sB)}, {W}, 10")
        A(f"s_add_u32 {s(sB)}, {s(sB)}, {s(sA)}")
        A(f"s_add_u32 {s(sC)}, {s(sB)}, 4096")
        pack8(96, acc(0,0), acc(0,1))
        A(f"buffer_store_dwordx4 v[96:99], {v(vL16)}, {s(SWS,4)}, {s(sB)} offen")
        pack8(100, acc(1,0), acc(1,1))
        A(f"buffer_store_dwordx4 v[100:103], {v(vL16)}, {s(SWS,4)}, {s(sC)} offen")
        seghead(sA, 12, G.WS_HX)
        A(f"s_lshr_b32 {s(sB)}, {W}, 1")
        A(f"s_lshl_b32 {s(sB)}, {s(sB)}, 10")
        A(f"s_and_b32 {s(sC)}, {W}, 1")
        A(f"s_lshl_b32 {s(sC)}, {s(sC)}, 3")
        A(f"s_add_u32 {s(sB)}, {s(sB)}, {s(sC)}")
        A(f"s_add_u32 {s(sB)}, {s(sB)}, {s(sA)}")
        A(f"s_mov_b32 {s(sD)}, 0xffff0000")
        A(f"s_mov_b32 {s(sE)}, 0x3d372713")
        A(f"s_mov_b32 {s(sF)}, 0xc0135761")
        def rnd2(x):
            A(f"v_cvt_pk_bf16_f32 v112, {v(x)}, {v(x+1)}")
            A(f"v_lshlrev_b32 {v(x)}, 16, v112")
            A(f"v_and_b32 {v(x+1)}, {s(sD)}, v112")
        for rt in range(2):
            gt, up = acc(rt, 2), acc(rt, 3)
            for h2 in (0, 2): rnd2(gt + h2); rnd2(up + h2)
            for r in range(4):
                A(f"v_mul_f32 {v(113+r)}, {v(gt+r)}, {v(gt+r)}")
                A(f"v_fma_f32 {v(113+r)}, {v(113+r)}, {s(sE)}, 1.0")
                A(f"v_mul_f32 {v(113+r)}, {v(113+r)}, {v(gt+r)}")
                A(f"v_mul_f32 {v(113+r)}, {s(sF)}, {v(113+r)}")
                A(f"v_exp_f32 {v(113+r)}, {v(113+r)}")
            for r in range(4):
                A(f"v_add_f32 {v(113+r)}, 1.0, {v(113+r)}")
                A(f"v_rcp_f32 {v(113+r)}, {v(113+r)}")
            for r in range(4): A(f"v_mul_f32 {v(gt+r)}, {v(gt+r)}, {v(113+r)}")
            for h2 in (0, 2): rnd2(gt + h2)
            for r in range(4): A(f"v_mul_f32 {v(gt+r)}, {v(gt+r)}, {v(up+r)}")
            d = 104 + 2*rt
            A(f"v_cvt_pk_bf16_f32 {v(d)}, {v(gt)}, {v(gt+1)}")
            A(f"v_cvt_pk_bf16_f32 {v(d+1)}, {v(gt+2)}, {v(gt+3)}")
            A(f"v_and_b32 {v(d)}, {s(sHM)}, {v(d)}")
            A(f"v_and_b32 {v(d+1)}, {s(sHM)}, {v(d+1)}")
            A(f"buffer_store_dwordx2 {v(d,2)}, {v(vL16)}, {s(SWS,4)}, {s(sB)} offen offset:{rt*2048}")
    proj_pass("L_wk_p2", (), epi2, False)

    wst(4)
    chunks = []
    A(f"s_lshl_b32 {s(sE)}, {H}, 17")
    A(f"s_lshl_b32 {s(sF)}, {H}, 16")
    for ks in range(6):
        for q in range(2):
            reads = [lambda R, ct=ct, ks=ks, q=q: f"ds_read_b64_tr_b16 {a((ks*8+ct)*4 + 2*q, 2)}, v9 offset:{R + ct*32}" for ct in range(8)]
            k2 = ks if ks < 4 else ks - 4
            chunks.append(dict(srd=SWO if ks < 4 else SWD, voff=8, sbase=sE if ks < 4 else sF,
                               soff=[(32*k2 + 16*q + rr) * 1024 for rr in range(4)], reads=reads))
    A(f"s_lshl_b32 {s(sT0)}, {W}, 10")
    G.run_loader(A, chunks)

    wst(5)
    KX, QF, VX, HF, KM, VMR, VMO = 16, 48, 64, 80, 96, 112, 116
    T0, T1, T2, PM, ONE, OT, LL, MASK, SEL, M, M2, M3 = 132, 136, 140, 144, 148, 152, 168, 172, 180, 184, 185, 186
    XR, RES, OAC, OF, GG = 188, 168, 192, 16, 48
    wait_ctr("L_wk_rw", s(G.sDB), G.DBG_RS)
    A(f"s_and_b32 {s(sA)}, {W}, 1")
    A(f"s_lshl_b32 {s(sA)}, {s(sA)}, 4")
    A(f"v_add_u32 v14, {s(sA)}, {v(vR16)}")
    A(f"v_lshlrev_b32 v15, 2, {v(vG)}")
    A("v_mov_b32 v13, 0xf149f2ca")
    for i in range(8):
        A(f"v_add_u32 {v(M)}, {16*(i>>2) + (i&3)}, v15")
        A(f"v_cmp_gt_u32 vcc, {v(M)}, v14")
        A(f"v_cndmask_b32 {v(MASK+i)}, 0, v13, vcc")
    for i in range(4): A(f"v_mov_b32 {v(ONE+i)}, 0x3f803f80")
    for i in range(1, 4): A(f"v_mov_b32 {v(PM+i)}, 0")
    for e in range(4):
        for i in range(1, 4): A(f"v_mov_b32 {v(VMO+4*e+i)}, 0")
    A("v_and_b32 v13, 1, v0")
    A("v_cmp_eq_u32 vcc, 0, v13")
    A("v_mov_b32 v14, 0x3f80")
    A("v_mov_b32 v15, 0x3f800000")
    A("v_cndmask_b32 v14, v15, v14, vcc")
    A(f"v_lshrrev_b32 v13, 1, {v(vR16)}")
    for r in range(4):
        A(f"v_cmp_eq_u32 vcc, {r}, v13")
        A(f"v_cndmask_b32 {v(SEL+r)}, 0, v14, vcc")
    A("v_and_b32 v13, 3, v0")
    A("v_bfe_u32 v14, v0, 2, 1")
    A("v_lshl_add_u32 v13, v14, 4, v13")
    A("v_lshlrev_b32 v13, 10, v13")
    A(f"v_lshl_add_u32 v13, {v(vG)}, 3, v13")
    A(f"s_lshl_b32 {s(sA)}, {W}, 12")
    A(f"s_lshl_b32 {s(sB)}, {H}, 5")
    A(f"s_add_u32 {s(sA)}, {s(sA)}, {s(sB)}")
    A(f"v_add_u32 v13, {s(sA)}, v13")
    A(f"v_cmp_gt_u32 vcc, 8, {v(vR16)}")
    A("v_mov_b32 v14, 0x7ffffff0")
    A("v_cndmask_b32 v6, v14, v13, vcc")
    A(f"s_and_b32 {s(sA)}, {W}, 1")
    A(f"s_lshl_b32 {s(sA)}, {s(sA)}, 12")
    A(f"s_lshr_b32 {s(sB)}, {W}, 1")
    A(f"s_lshl_b32 {s(sB)}, {s(sB)}, 11")
    A(f"s_add_u32 {s(sA)}, {s(sA)}, {s(sB)}")
    A(f"v_add_u32 v7, {s(sA)}, {v(vL16)}")
    A(f"s_lshl_b32 {s(sA)}, {W}, 13")
    A(f"s_add_u32 {s(sA)}, {s(sA)}, 16384")
    A(f"v_mul_u32_u24 v13, 1088, {v(vG)}")
    A(f"v_lshl_add_u32 v13, {v(vR16)}, 3, v13")
    A(f"v_add_u32 v8, {s(sA)}, v13")
    A("v_and_b32 v13, 3, v0")
    A("v_mul_u32_u24 v13, 1088, v13")
    A("v_lshrrev_b32 v14, 2, v0")
    A("v_lshl_add_u32 v13, v14, 3, v13")
    A(f"v_add_u32 v9, {s(sA)}, v13")
    for ct in range(8):
        A(f"s_xor_b32 {s(sA)}, {H}, {ct}")
        A(f"s_lshl_b32 {s(sA)}, {s(sA)}, 10")
        A(f"s_lshl_b32 {s(sB)}, {W}, 18")
        A(f"s_add_u32 {s(sA)}, {s(sA)}, {s(sB)}")
        A(f"s_add_u32 {s(sRO+ct)}, {s(sA)}, {ct*32768}")
    A(f"s_mov_b32 {s(sCS)}, 0x3e0293ee")
    A(f"s_mov_b32 {s(sCS+1)}, 0x3e0293ee")
    def attn():
        ld = lambda d, so, off: A(f"buffer_load_dwordx4 {v(d,4)}, {v(vL16)}, {s(SWS,4)}, {s(so)} offen offset:{off} sc1")
        seghead(sA, 12, G.WS_HX)
        for i in range(4): ld(HF + 4*i, sA, i*1024)
        seghead(sA, 13, G.WS_QX)
        A(f"s_and_b32 {s(sB)}, {W}, 1")
        A(f"s_lshl_b32 {s(sB)}, {s(sB)}, 12")
        A(f"s_add_u32 {s(sA)}, {s(sA)}, {s(sB)}")
        for i in range(4): ld(QF + 4*i, sA, i*1024)
        seghead(sA, 14, G.WS_KVX)
        for i in range(4): ld(KX + 4*i, sA, i*1024)
        A(f"s_add_u32 {s(sB)}, {s(sA)}, 4096")
        for i in range(4): ld(KX + 16 + 4*i, sB, i*1024)
        A(f"s_lshr_b32 {s(sB)}, {W}, 1")
        A(f"s_lshl_b32 {s(sB)}, {s(sB)}, 12")
        A(f"s_add_u32 {s(sB)}, {s(sB)}, {s(sA)}")
        A(f"s_add_u32 {s(sB)}, {s(sB)}, 8192")
        for i in range(4): ld(VX + 4*i, sB, i*1024)
        A(f"s_lshl_b32 {s(sD)}, {s(sSEG)}, 15")
        A(f"buffer_load_dwordx2 {v(XR,2)}, v6, {s(SX,4)}, {s(sD)} offen")
        oac = lambda rt, ct: v(OAC + (ct*2 + rt)*4, 4)
        A("s_waitcnt vmcnt(17)")
        for k2 in range(2):
            for ct in range(8):
                for rt in range(2):
                    mf(oac(rt, ct), v(HF + (rt*2 + k2)*4, 4), a(((4 + k2)*8 + ct)*4, 4), "0" if k2 == 0 else oac(rt, ct))
        A("s_waitcnt vmcnt(5)")
        for ks in range(4):
            mf(v(T0,4), v(KX + 4*ks, 4), v(QF + 4*ks, 4), v(MASK,4) if ks == 0 else v(T0,4))
        for ks in range(4):
            mf(v(T1,4), v(KX + 16 + 4*ks, 4), v(QF + 4*ks, 4), v(MASK+4,4) if ks == 0 else v(T1,4))
        seghead(sA, 12, G.WS_KVM)
        A.label("L_wk_km")
        for i in range(4): ld(KM + 4*i, sA, i*1024)
        A("s_waitcnt vmcnt(0)")
        A(f"v_max_u32 {v(M)}, {v(KM)}, {v(KM+1)}")
        for i in range(2, 16, 2): A(f"v_max3_u32 {v(M)}, {v(M)}, {v(KM+i)}, {v(KM+i+1)}")
        A(f"v_cmp_eq_u32 vcc, {SENT}, {v(M)}")
        A("s_cbranch_vccz L_wk_kmok")
        A("s_sleep 4")
        G.poll_budget(A, "L_wk_km", "L_wk_kmok")
        A.label("L_wk_kmok")
        wst_seg(2)
        for i in range(4):
            for t2 in range(2):
                A(f"ds_write_b32 v8, {v(KM+4*i+t2)} offset:{(32*i+16*t2)*8}")
        A(f"s_cmp_ge_u32 {W}, 2")
        A("s_cselect_b64 vcc, -1, 0")
        for e in range(4):
            A(f"v_cndmask_b32 {v(VMO+4*e)}, {v(KM+4*(e>>1)+2+(e&1))}, {v(KM+8+4*(e>>1)+2+(e&1))}, vcc")
        A(lg(0))
        for ks in range(4):
            for q in range(2):
                A(f"ds_read_b64_tr_b16 {v(KM+4*ks+2*q,2)}, v9 offset:{(32*ks+16*q)*8}")
        for ks in range(4):
            A(lg(6 - 2*ks))
            mf(v(T2,4), v(KM + 4*ks, 4), v(QF + 4*ks, 4), "0" if ks == 0 else v(T2,4))
        A(f"v_max3_f32 {v(M)}, {v(T0)}, {v(T0+1)}, {v(T0+2)}")
        A(f"v_max3_f32 {v(M)}, {v(M)}, {v(T0+3)}, {v(T1)}")
        A(f"v_max3_f32 {v(M)}, {v(M)}, {v(T1+1)}, {v(T1+2)}")
        A(f"v_max_f32 {v(M)}, {v(M)}, {v(T1+3)}")
        A(f"v_max3_f32 {v(M2)}, {v(M)}, {v(T2)}, {v(T2+1)}")
        A(f"v_max3_f32 {v(M)}, {v(M)}, {v(T2)}, {v(T2+1)}")
        A(f"v_permlane32_swap_b32 {v(M)}, {v(M2)}")
        A(f"v_max_f32 {v(M3)}, {v(M)}, {v(M2)}")
        A(f"v_max_f32 {v(M)}, {v(M)}, {v(M2)}")
        A(f"v_permlane16_swap_b32 {v(M)}, {v(M3)}")
        A(f"v_max_f32 {v(M)}, {v(M)}, {v(M3)}")
        A(f"v_mul_f32 {v(M)}, {s(sCS)}, {v(M)}")
        for r in range(T0, T0 + 10, 2):
            A(f"v_pk_fma_f32 {v(r,2)}, {v(r,2)}, {s(sCS,2)}, {v(M,2)} op_sel_hi:[1,1,0] neg_lo:[0,0,1] neg_hi:[0,0,1]")
        for r in range(T0, T0 + 10): A(f"v_exp_f32 {v(r)}, {v(r)}")
        for i in range(4): A(f"v_cvt_pk_bf16_f32 {v(T0+i)}, {v(T0+2*i)}, {v(T0+2*i+1)}")
        A(f"v_cvt_pk_bf16_f32 {v(PM)}, {v(T2)}, {v(T2+1)}")
        mf(v(LL,4), v(ONE,4), v(T0,4), "0")
        mf(v(LL,4), v(ONE,4), v(PM,4), v(LL,4))
        for e in range(4):
            mf(v(OT+4*e,4), v(VX+4*e,4), v(T0,4), "0")
            mf(v(OT+4*e,4), v(VMO+4*e,4), v(PM,4), v(OT+4*e,4))
        A(f"v_rcp_f32 {v(M)}, {v(LL)}")
        for r in range(OT, OT + 16): A(f"v_mul_f32 {v(r)}, {v(r)}, {v(M)}")
        pack8(OT, OT, OT + 4)
        pack8(OT + 4, OT + 8, OT + 12)
        A(f"ds_write_b128 v7, {v(OT,4)} offset:{L_OI}")
        A(f"ds_write_b128 v7, {v(OT+4,4)} offset:{L_OI+1024}")
        A(lg(0))
        A("s_barrier")
        for i in range(8): A(f"ds_read_b128 {v(OF+4*i,4)}, {v(vL16)} offset:{L_OI + i*1024}")
        A(f"v_add_u32 v13, {s(sRSB)}, {v(vL16)}")
        A(lg(0))
        A("s_barrier")
        def fin(ct):
            x = OAC + ct*8
            pack8(x, x, x + 4)
            A(f"buffer_store_dwordx4 {v(x,4)}, v13, {s(SWS,4)}, {s(sRO+ct)} offen")
        for ct in range(8):
            for ks in range(4):
                for rt in range(2):
                    mf(oac(rt, ct), v(OF + (rt*4 + ks)*4, 4), a((ks*8 + ct)*4, 4), oac(rt, ct))
            if ct: fin(ct - 1)
        fin(7)
        A(f"s_lshl_b32 {s(sA)}, {H}, 15")
        A(f"s_add_u32 {s(sA)}, {s(sA)}, {s(sRSB)}")
        A.label("L_wk_rs")
        for i in range(8):
            A(f"s_add_u32 {s(sB)}, {s(sA)}, {i*4096}")
            A(f"buffer_load_dwordx4 {v(GG+4*i,4)}, v12, {s(SWS,4)}, {s(sB)} offen sc1")
        A("s_waitcnt vmcnt(0)")
        for i in range(8):
            mf(v(RES,4), v(GG+4*i,4), v(SEL,4), "0" if i == 0 else v(RES,4))
            if i == 0: A(f"v_max_u32 {v(M)}, {v(GG)}, {v(GG+1)}")
            else: A(f"v_max3_u32 {v(M)}, {v(M)}, {v(GG+4*i)}, {v(GG+4*i+1)}")
            A(f"v_max3_u32 {v(M)}, {v(M)}, {v(GG+4*i+2)}, {v(GG+4*i+3)}")
        A(f"v_cmp_eq_u32 vcc, {SENT}, {v(M)}")
        A("s_cbranch_vccz L_wk_rsok")
        A("s_sleep 1")
        G.poll_budget(A, "L_wk_rs", "L_wk_rsok")
        A.label("L_wk_rsok")
        A(f"s_mov_b32 {s(sC)}, 0xffff0000")
        A(f"v_lshlrev_b32 {v(M)}, 16, {v(XR)}")
        A(f"v_and_b32 {v(M2)}, {s(sC)}, {v(XR)}")
        A(f"v_lshlrev_b32 {v(M3)}, 16, {v(XR+1)}")
        A(f"v_and_b32 {v(XR+1)}, {s(sC)}, {v(XR+1)}")
        A("s_nop 3")
        A(f"v_add_f32 {v(RES)}, {v(RES)}, {v(M)}")
        A(f"v_add_f32 {v(RES+1)}, {v(RES+1)}, {v(M2)}")
        A(f"v_add_f32 {v(RES+2)}, {v(RES+2)}, {v(M3)}")
        A(f"v_add_f32 {v(RES+3)}, {v(RES+3)}, {v(XR+1)}")
        A(f"v_cvt_pk_bf16_f32 {v(RES)}, {v(RES)}, {v(RES+1)}")
        A(f"v_cvt_pk_bf16_f32 {v(RES+1)}, {v(RES+2)}, {v(RES+3)}")
        A(f"buffer_store_dwordx2 {v(RES,2)}, v6, {s(SOUT,4)}, {s(sD)} offen")
        wst_seg(3)
        for i in range(4): A(f"v_mov_b32 {v(GG+i)}, {SENT}")
        for i in range(8):
            A(f"s_add_u32 {s(sB)}, {s(sA)}, {i*4096}")
            A(f"buffer_store_dwordx4 {v(GG,4)}, v12, {s(SWS,4)}, {s(sB)} offen")
        A(f"s_xor_b32 {s(sRSB)}, {s(sRSB)}, 0x100000")
    seg_loop("L_wk_at", attn)
    A("s_waitcnt vmcnt(0)")
    A("s_endpgm")
```

```python
import sys
from asmlib import *

NAME = "parallel_sum__memory_aug_recurrent_mem_tr__geglu_ffn__prompt"
KN = NAME + "_kernel"

WS_XN   = 0x0000000
WS_KVX  = 0x1000000
WS_QX   = 0x3000000
WS_HX   = 0x4000000
WS_KVM  = 0x5000000
WS_HOP1 = 0x6000000
WS_HOP2 = 0x6200000
WS_FLG  = 0x6300000
WS_PROF = 0x6400000
WS_RS   = 0x7000000
WS_SIZE = 0x10000000

DBG_RANK, DBG_INIT, DBG_RS = 0, 2, 4

SX, SWS, SDBG, SWQ, SWK, SWV, SWO, SWG, SWU, SWD, SOUT, SM0 = 4, 8, 12, 16, 20, 24, 28, 32, 36, 40, 44, 48
sWAVE, sXCC, sRANK, sBUD = 52, 53, 54, 55
sT0, sT1, sT2, sT3 = 56, 57, 58, 59
sDB = 3
sSTEP, sCLS, sH1L, sKXL, sH1S0, sKVX, sKVM, sH2N, sKM = 60, 61, 62, 63, 64, 68, 69, 70, 71
sCSC, sVM, sONE, sTCH, sXO = 72, 75, 100, 3, 76
sVX, sTC2, sFL, sH1R = 77, 78, 79, 69
sBD2, sSELM, sM0P, sARM, sFS, sH2, sH2P, sX2 = 74, 92, 66, 67, 5, 6, 40, 42
sRDY = 0
ABSSTEP = 40
FINE, FSTEP, RSM = 0, 4, 0
S1, S2, K1, PAT1, PAT2 = 0x000, 0x000, 8, '010010', '01000100'
P1REP, P2REP, P1PRE, P2PRE, P1PAD = 3, 3, 6, 5, 0
sPROF = 80

SENT = -1
OPT = set(sys.argv[2:])
for o_ in list(OPT):
    if '=' in o_:
        k_, v_ = o_.split('=')
        globals()[k_] = v_ if k_.startswith('PAT') else int(v_, 0)


def srd(A, base, argoff, nbytes):
    A(f"s_load_dwordx2 {s(base,2)}, s[0:1], {argoff}")
def srd2(A, base, nbytes):
    A(f"s_mov_b32 {s(base+2)}, {nbytes:#x}")
    A(f"s_mov_b32 {s(base+3)}, 0x00020000")

def prologue(A):
    if 'prof' in OPT or 'tl' in OPT: A("s_memrealtime s[96:97]")
    A("s_cmp_ge_u32 s2, 256")
    A("s_cbranch_scc1 L_end")
    bufs = [(SX, 0, 2097152), (SM0, 8, 8192), (SWQ, 16, 4194304), (SWK, 24, 4194304), (SWV, 32, 4194304),
            (SWO, 40, 4194304), (SWG, 64, 1409024), (SWU, 72, 1409024), (SWD, 80, 1409024),
            (SOUT, 88, 2097152), (SDBG, 96, 256), (SWS, 104, WS_SIZE)]
    for b, off, n in bufs: srd(A, b, off, n)
    A(f"s_getreg_b32 {s(sXCC)}, hwreg(HW_REG_XCC_ID)")
    A(f"s_and_b32 {s(sXCC)}, {s(sXCC)}, 7")
    A("v_lshrrev_b32 v1, 6, v0")
    A(f"v_readfirstlane_b32 {s(sWAVE)}, v1")
    A("v_and_b32 v0, 63, v0")
    A(f"s_mov_b32 {s(sBUD)}, 0x400000")
    A(f"s_and_b32 {s(sDB)}, {s(sXCC)}, 3")
    A(f"s_lshl_b32 {s(sDB)}, {s(sDB)}, 6")
    A(f"s_and_b32 {s(sT0)}, {s(sXCC)}, 4")
    A(f"s_add_u32 {s(sDB)}, {s(sDB)}, {s(sT0)}")
    A("s_waitcnt lgkmcnt(0)")
    for b, off, n in bufs: srd2(A, b, n)
    A(f"s_cmp_lg_u32 {s(sWAVE)}, 0")
    A("s_cbranch_scc1 L_rank_wait")
    A(f"v_mov_b32 v2, {s(sDB)}")
    A("v_mov_b32 v3, 1")
    A("s_mov_b64 exec, 1")
    A(f"buffer_atomic_add v3, v2, {s(SDBG,4)}, 0 offen offset:{DBG_RANK*4} sc0 sc1")
    A("s_waitcnt vmcnt(0)")
    A("v_mov_b32 v2, 0")
    A("ds_write_b32 v2, v3")
    A("s_mov_b64 exec, -1")
    A("s_waitcnt lgkmcnt(0)")
    A.label("L_rank_wait")
    A("s_barrier")
    A("v_mov_b32 v2, 0")
    A("ds_read_b32 v3, v2")
    A("s_waitcnt lgkmcnt(0)")
    A(f"v_readfirstlane_b32 {s(sRANK)}, v3")
    A("s_barrier")
    A(f"s_cmp_ge_u32 {s(sRANK)}, 32")
    A("s_cbranch_scc1 L_end")

def poll_budget(A, lretry, lok):
    A(f"s_cmp_eq_u32 {s(sBUD)}, 0")
    A(f"s_cbranch_scc1 {lok}")
    A(f"s_sub_u32 {s(sBUD)}, {s(sBUD)}, 1")
    A(f"s_branch {lretry}")

RING = 5
ISTR = RING * 4096 + 32

def run_loader(A, chunks, after_prime=None):
    n = len(chunks)
    def issue(i):
        c = chunks[i]
        slot = i % RING
        for rr in range(4):
            A(f"s_add_u32 m0, {s(sT0)}, {rr*ISTR + slot*4096}")
            if c.get('sbase') is not None:
                A(f"s_add_u32 {s(sT1)}, {s(c['sbase'])}, {c['soff'][rr]}")
            else:
                A(f"s_mov_b32 {s(sT1)}, {c['soff'][rr]}")
            A(f"buffer_load_dwordx4 {v(c['voff'])}, {s(c['srd'][rr] if isinstance(c['srd'], list) else c['srd'],4)}, {s(sT1)} offen lds")
    for i in range(min(RING - 1, n)): issue(i)
    if after_prime: after_prime(A)
    for i in range(n):
        infl = min(RING - 2, n - 1 - i)
        A(f"s_waitcnt vmcnt({infl*4}) lgkmcnt(0)")
        A("s_barrier")
        if i + RING - 1 < n: issue(i + RING - 1)
        if chunks[i].get('first'): chunks[i]['first'](A)
        for t in chunks[i]['reads']: A(t(( i % RING) * 4096))
        if chunks[i].get('post'):
            A("s_waitcnt lgkmcnt(0)")
            for t in chunks[i]['post']: A(t)
    A("s_waitcnt lgkmcnt(0)")
    A("s_barrier")

L_MEM, L_QK, L_O, L_KX, L_WB, L_WA = 0, 8192, 24576, 16384, 32768, 98304
QKS = 1088
vLANE, vIDX, vL16, vMW, vMR1, vMR2, vMR3, vQKW, vXR, vP, vWA, vWB, vH1S, vFLAG, vH2S, vSEL = range(16)
RA, RK, RQ, RV, RKX, RS_, RVX, RT = 16, 48, 56, 64, 72, 104, 120, 116
RX = 48

OSEQ = [(a_, 0) for a_ in range(4)] + [(a_, i_) for a_ in range(4) for i_ in (1, 2, 3)]

def team_opnd(mat, t, j):
    if mat == 'Q': return ('a', (t * 8 + j) * 8)
    if mat == 'V': return ('a', 128 + (t * 8 + j) * 8)
    if mat == 'K': return None if j < 6 else ('v', 128 + ((j - 6) * 2 + t) * 8)
    if mat == 'O':
        n = OSEQ.index((t, j))
        return None if n < 4 else ('v', 160 + (n - 4) * 8)
def rtxt(loc, off, n): return (a if loc[0] == 'a' else v)(loc[1] + off, n)

def team(A, prof=False, nsteps=64):
    W, H = s(sWAVE), s(sRANK)
    A.label("L_team")
    if prof or 'tl' in OPT: A("s_mov_b32 s4, s96")
    if 'tl' in OPT:
        A("s_memrealtime s[94:95]")
    A("v_and_b32 v16, 15, v0")
    A("v_lshrrev_b32 v17, 4, v0")
    A(f"v_lshlrev_b32 {v(vL16)}, 4, v0")
    A("v_lshrrev_b32 v18, 3, v0")
    A("v_lshlrev_b32 v18, 7, v18")
    A(f"v_add_u32 {v(vP)}, v18, {v(vL16)}")
    A(f"s_lshr_b32 {s(sT1)}, {W}, 1")
    A(f"s_lshl_b32 {s(sT1)}, {s(sT1)}, 12")
    A(f"s_and_b32 {s(sCLS)}, {W}, 1")
    A(f"s_lshl_b32 {s(sCLS)}, {s(sCLS)}, 7")
    A(f"s_add_u32 {s(sCLS)}, {s(sCLS)}, {s(sT1)}")
    A(f"s_lshl_b32 {s(sT0)}, {H}, 13")
    A(f"s_add_u32 {s(sT0)}, {s(sT0)}, {s(sCLS)}")
    A(f"s_add_u32 {s(sH1L)}, {s(sT0)}, {WS_HOP1}")
    for i in range(4): A(f"v_mov_b32 {v(124+i)}, {SENT}")
    A(f"s_lshl_b32 {s(sFL)}, {H}, 8")
    A(f"s_add_u32 {s(sFL)}, {s(sFL)}, {WS_FLG}")
    A("v_lshlrev_b32 v18, 2, v0")
    if 'team' not in OPT: A(f"buffer_store_dword v124, v18, {s(SWS,4)}, {s(sFL)} offen sc1")
    A(f"s_add_u32 {s(sT1)}, {s(sH1L)}, 0x40000")
    for i in range(2):
        A(f"buffer_store_dwordx4 {v(124,4)}, {v(vP)}, {s(SWS,4)}, {s(sH1L)} offen offset:{i*2048}")
        A(f"buffer_store_dwordx4 {v(124,4)}, {v(vP)}, {s(SWS,4)}, {s(sT1)} offen offset:{i*2048}")
    A("v_and_b32 v18, 1, v17")
    A("v_lshrrev_b32 v19, 1, v17")
    A("v_and_b32 v20, 1, v0")
    A("v_lshl_add_u32 v21, v20, 1, v18")
    A("v_lshlrev_b32 v21, 4, v21")
    A("v_and_b32 v20, 2, v0")
    A("v_add_u32 v20, v20, v19")
    A("v_lshl_add_u32 v21, v20, 2, v21")
    A(f"s_and_b32 {s(sT0)}, {H}, 24")
    A(f"s_lshl_b32 {s(sT1)}, {W}, 1")
    A(f"s_add_u32 {s(sT0)}, {s(sT0)}, {s(sT1)}")
    A(f"s_bfe_u32 {s(sT1)}, {H}, 0x10002")
    A(f"s_add_u32 {s(sT0)}, {s(sT0)}, {s(sT1)}")
    A(f"s_and_b32 {s(sT1)}, {H}, 3")
    A(f"s_lshr_b32 {s(sT2)}, {H}, 1")
    A(f"s_lshl_b32 {s(sT2)}, {s(sT2)}, 8")
    A(f"s_and_b32 {s(sT3)}, {H}, 1")
    A(f"s_lshl_b32 {s(sT3)}, {s(sT3)}, 6")
    A(f"s_add_u32 {s(sT2)}, {s(sT2)}, {s(sT3)}")
    A(f"s_add_u32 {s(sT2)}, {s(sT2)}, {s(sCLS)}")
    A(f"s_add_u32 {s(sT2)}, {s(sT2)}, {WS_HOP2}")
    A(f"v_add_u32 {v(vH2S)}, {s(sT2)}, v21")
    A("v_cmp_gt_u32 vcc, 4, v16")
    A("v_mov_b32 v23, 0x7ffffff0")
    A(f"v_cndmask_b32 {v(vH2S)}, v23, {v(vH2S)}, vcc")
    A(f"s_lshl_b32 {s(sT0)}, {s(sT0)}, 5")
    A(f"s_lshl_b32 {s(sT1)}, {s(sT1)}, 11")
    A(f"s_add_u32 {s(sT0)}, {s(sT0)}, {s(sT1)}")
    A("v_and_b32 v22, 3, v0")
    A("v_lshl_add_u32 v22, v22, 1, v19")
    A("v_lshlrev_b32 v22, 1, v22")
    A("v_lshl_add_u32 v22, v18, 10, v22")
    A(f"buffer_load_ushort v24, v22, {s(SM0,4)}, {s(sT0)} offen")
    A(f"buffer_load_ushort v25, v22, {s(SM0,4)}, {s(sT0)} offen offset:16")
    A(f"s_movk_i32 {s(sT1)}, 0x2000")
    A(f"buffer_store_dword v124, {v(vH2S)}, {s(SWS,4)}, {s(sT1)} offen")
    A("s_waitcnt vmcnt(1)")
    A("v_lshl_or_b32 v26, v25, 16, v24")
    A(f"buffer_store_dword v26, {v(vH2S)}, {s(SWS,4)}, 0 offen")
    A("v_lshlrev_b32 v25, 3, v18")
    A("v_xor_b32 v25, v25, v16")
    A("v_lshlrev_b32 v25, 4, v25")
    A("v_lshl_add_u32 v25, v19, 17, v25")
    A("v_lshl_add_u32 v25, v18, 15, v25")
    A(f"s_lshl_b32 {s(sT0)}, {W}, 18")
    A(f"s_lshl_b32 {s(sT1)}, {H}, 8")
    A(f"s_add_u32 {s(sT0)}, {s(sT0)}, {s(sT1)}")
    A(f"v_add_u32 v100, {s(sT0)}, v25")
    A("v_lshlrev_b32 v25, 14, v18")
    A("v_lshl_add_u32 v25, v19, 12, v25")
    A("v_lshl_add_u32 v25, v16, 4, v25")
    A(f"s_lshl_b32 {s(sT0)}, {H}, 17")
    A(f"s_lshl_b32 {s(sT1)}, {W}, 8")
    A(f"s_add_u32 {s(sT0)}, {s(sT0)}, {s(sT1)}")
    A(f"v_add_u32 v101, {s(sT0)}, v25")
    A("v_bfe_u32 v25, v0, 2, 2")
    A(f"v_mul_u32_u24 v25, {ISTR}, v25")
    A("v_lshl_add_u32 v25, v17, 8, v25")
    A("v_and_b32 v26, 3, v0")
    A("v_lshlrev_b32 v27, 7, v18")
    A(f"s_lshl_b32 {s(sT0)}, {W}, 6")
    A(f"v_xor_b32 v27, {s(sT0)}, v27")
    A("v_lshl_add_u32 v27, v26, 3, v27")
    A("v_add_u32 v27, v27, v25")
    for jp in range(4):
        A(f"s_xor_b32 {s(sT0)}, {W}, {jp}")
        A(f"s_lshl_b32 {s(sT0)}, {s(sT0)}, 10")
        A(f"v_add_u32 {v(102+jp)}, {s(sT0)}, v27")
    A("v_lshrrev_b32 v27, 1, v26")
    A("v_lshlrev_b32 v27, 5, v27")
    A("v_and_b32 v28, 1, v0")
    A("v_lshl_add_u32 v27, v28, 3, v27")
    A("v_lshl_add_u32 v27, v17, 8, v27")
    A("v_bfe_u32 v28, v0, 3, 1")
    A("v_lshl_add_u32 v27, v28, 4, v27")
    A("v_bfe_u32 v28, v0, 2, 1")
    A(f"v_mul_u32_u24 v28, {ISTR}, v28")
    A("v_add_u32 v27, v27, v28")
    for i in range(4):
        A(f"s_xor_b32 {s(80+i)}, {W}, {i}")
        A(f"s_lshl_b32 {s(80+i)}, {s(80+i)}, 15")
    A(f"s_lshl_b32 {s(sT0)}, {W}, 10")
    A(f"v_add_u32 v106, {s(sT0)}, v27")
    A(f"s_lshl_b32 {s(sT1)}, {W}, 11")
    A(f"s_add_u32 {s(sT2)}, {s(sT1)}, {L_WA}")
    A(f"v_add_u32 {v(vWA)}, {s(sT2)}, {v(vL16)}")
    A(f"s_add_u32 {s(sT2)}, {s(sT1)}, {L_WB}")
    A(f"v_add_u32 {v(vWB)}, {s(sT2)}, {v(vL16)}")
    A(f"v_add_u32 {v(vMW)}, {s(sT1)}, {v(vL16)}")
    for p, r in ((1, vMR1), (2, vMR2), (3, vMR3)):
        A(f"s_xor_b32 {s(sT2)}, {W}, {p}")
        A(f"s_lshl_b32 {s(sT2)}, {s(sT2)}, 11")
        A(f"v_add_u32 {v(r)}, {s(sT2)}, {v(vL16)}")
    A("v_and_b32 v28, 2, v0")
    A("v_cmp_eq_u32 vcc, 0, v28")
    A("v_mov_b32 v29, 0xeeee")
    A("v_mov_b32 v30, 0x4444")
    A(f"v_cndmask_b32 {v(vIDX)}, v29, v30, vcc")
    A(f"v_mul_u32_u24 v28, {QKS}, v17")
    A("v_lshl_add_u32 v28, v16, 3, v28")
    A(f"s_lshl_b32 {s(sT2)}, {W}, 8")
    A(f"s_add_u32 {s(sT2)}, {s(sT2)}, {L_QK}")
    A(f"v_add_u32 {v(vQKW)}, {s(sT2)}, v28")
    A(f"v_mul_u32_u24 v28, {QKS}, v26")
    A("v_lshrrev_b32 v29, 2, v0")
    A("v_lshl_add_u32 v28, v29, 3, v28")
    A(f"v_add_u32 {v(vXR)}, {L_QK}, v28")
    A("v_lshrrev_b32 v30, 3, v16")
    A("v_lshl_add_u32 v30, v30, 2, v17")
    A("v_lshlrev_b32 v28, 13, v30")
    A("v_and_b32 v29, 7, v0")
    A("v_lshl_add_u32 v28, v29, 3, v28")
    A("v_lshlrev_b32 v30, 2, v30")
    A(f"s_xor_b32 {s(sT3)}, {W}, {H}")
    A(f"v_xor_b32 v30, {s(sT3)}, v30")
    A("v_lshrrev_b32 v29, 1, v30")
    A("v_lshl_add_u32 v28, v29, 8, v28")
    A("v_and_b32 v29, 1, v30")
    A("v_lshl_add_u32 v28, v29, 6, v28")
    A(f"s_lshl_b32 {s(sT2)}, {W}, 16")
    A(f"v_add_u32 {v(vH1S)}, {s(sT2)}, v28")
    A(f"s_lshl_b32 {s(sT0)}, {W}, 10")

    chunks = []
    def first(A):
        l = A.newlabel("ini")
        A(f"s_cmp_lg_u32 {W}, 0")
        A(f"s_cbranch_scc1 {l}")
        A("v_mov_b32 v107, 0")
        A("v_mov_b32 v99, 1")
        A("s_mov_b64 exec, 1")
        A(f"buffer_atomic_add v99, v107, {s(SDBG,4)}, 0 offen offset:{DBG_INIT*4} sc1")
        A("s_mov_b64 exec, -1")
        A.label(l)
    for mat, sr in (('K', SWK), ('V', SWV), ('Q', SWQ)):
        for b in range(2):
            for hb in range(2):
                for q in range(2):
                    reads, post = [], []
                    tmp = 108
                    for jp in range(4):
                        j = 2 * jp + b
                        for t in range(2):
                            loc = team_opnd(mat, t, j)
                            if loc is None and j >= 4:
                                dst = v(16 + (2*(j-4)+t)*8 + 4*hb + 2*q, 2)
                            elif loc is None:
                                dst = v(tmp, 2)
                                post.append(f"ds_write_b64 {v(vWA)}, {dst} offset:{(2*j+t)*8192 + hb*1024 + q*8}")
                                tmp += 2
                            else:
                                dst = rtxt(loc, 4 * hb + 2 * q, 2)
                            reads.append(lambda R, dst=dst, jp=jp, t=t: f"ds_read_b64_tr_b16 {dst}, {v(102+jp)} offset:{R + t*32}")
                    chunks.append(dict(srd=sr, voff=100, soff=[(256*b + 128*hb + q + 8*(rr&1) + 2*(rr>>1)) * 8192 for rr in range(4)],
                                       reads=reads, post=post))
    for i in range(4):
        for hb in range(2):
            reads = []
            for q in range(2):
                for a_ in range(4):
                    loc = team_opnd('O', a_, i)
                    if loc is None: loc = ('v', 48 + OSEQ.index((a_, i)) * 8)
                    dst = rtxt(loc, 4 * hb + 2 * q, 2)
                    reads.append(lambda R, dst=dst, a_=a_, q=q: f"ds_read_b64_tr_b16 {dst}, v106 offset:{R + 2*q*ISTR + 64*a_}")
            chunks.append(dict(srd=SWO, voff=101, sbase=80+i, soff=[(8*hb + u) * 1024 for u in range(4)], reads=reads))
    chunks[0]['first'] = first
    run_loader(A, chunks)
    for i in range(8):
        for hb in range(2):
            A(f"ds_write_b128 {v(vWB)}, {v(16+i*8+hb*4,4)} offset:{i*8192 + hb*1024}")
    if 'tl' in OPT:
        A("s_memrealtime s[50:51]")
        A("s_waitcnt lgkmcnt(0)")
        A("s_mov_b32 s49, s94")
    A("v_mov_b32 v107, 0")
    A.label("L_tinit")
    A(f"buffer_load_dword v108, v107, {s(SDBG,4)}, 0 offen offset:{DBG_INIT*4} sc1")
    A("s_waitcnt vmcnt(0)")
    A("v_cmp_le_u32 vcc, 32, v108")
    A("s_cbranch_vccnz L_tinit_ok")
    poll_budget(A, "L_tinit", "L_tinit_ok")
    A.label("L_tinit_ok")

    A(f"s_mov_b32 {s(sSTEP)}, 0")
    A(f"s_mov_b32 {s(sH2)}, {WS_HOP2}")
    A(f"s_movk_i32 {s(sH2N)}, 0x2000")
    for q in range(2): A(f"s_mov_b32 {s(sH1S0+q)}, {WS_HOP1 + q*4096}")
    A(f"s_lshl_b32 {s(sT0)}, {H}, 14")
    A(f"s_lshl_b32 {s(sT1)}, {W}, 11")
    A(f"s_add_u32 {s(sT0)}, {s(sT0)}, {s(sT1)}")
    A(f"s_add_u32 {s(sKVX)}, {s(sT0)}, {WS_KVX}")
    A(f"s_add_u32 {s(sTCH)}, {s(sT1)}, 0x80000")
    A(f"s_lshl_b32 {s(sT0)}, {H}, 12")
    A(f"s_add_u32 {s(sKVM)}, {s(sT0)}, {WS_KVM}")
    A(f"s_mov_b32 {s(sCSC)}, 0x3e0293ee")
    if prof:
        for i in range(20): A(f"s_mov_b32 {s(sPROF+i)}, 0")
    NST = 14
    def stamp(k):
        if prof and not FINE: A(f"s_memtime {s(18+2*k,2)}")
    fine_n = [0]
    def fstamp(ph):
        if not (prof and FINE == ph): return []
        fine_n[0] += 1
        return [f"s_memtime {s(16+2*fine_n[0],2)}"]
    def stamp_end(n):
        if not prof: return
        if FINE: n = fine_n[0]
        if 'abs' in OPT:
            A("s_memtime s[44:45]")
            A("s_memrealtime s[46:47]")
        A("s_waitcnt lgkmcnt(0)")
        if 'abs' in OPT:
            A("s_sub_u32 s2, s44, s48"); A("s_add_u32 s50, s50, s2")
            A("s_sub_u32 s2, s46, s49"); A("s_add_u32 s51, s51, s2")
            l = A.newlabel("abs")
            A(f"s_cmp_eq_u32 {s(sSTEP)}, {ABSSTEP}")
            A(f"s_cbranch_scc0 {l}")
            for k in range(n + 1): A(f"s_mov_b32 {s(sPROF+k)}, {s(16+2*k)}")
            A.label(l)
            A(f"s_mov_b32 s16, {s(16+2*n)}")
            return
        for k in range(n):
            A(f"s_sub_u32 s2, {s(18+2*k)}, {s(16+2*k)}")
            A(f"s_add_u32 {s(sPROF+k)}, {s(sPROF+k)}, s2")
        A(f"s_mov_b32 s16, {s(16+2*n)}")

    def kv_wait(delta):
        l0, l1 = A.newlabel("kvw"), A.newlabel("kvok")
        A(f"s_add_u32 {s(sT1)}, {s(sSTEP)}, {delta}")
        A(f"s_min_u32 {s(sT1)}, {s(sT1)}, 63")
        A.label(l0)
        A(f"v_lshrrev_b32 {v(vFLAG)}, 2, {v(vL16)}")
        A(f"buffer_load_dword {v(vFLAG)}, {v(vFLAG)}, {s(SWS,4)}, {s(sFL)} offen sc1")
        A("s_waitcnt vmcnt(0)")
        A(f"v_cmp_ne_u32 {s(sRDY,2)}, {SENT}, {v(vFLAG)}")
        A("s_nop 3")
        A(f"s_bitcmp1_b64 {s(sRDY,2)}, {s(sT1)}")
        A(f"s_cbranch_scc1 {l1}")
        A("s_sleep 2")
        poll_budget(A, l0, l1)
        A.label(l1)
    def k_dma(soff):
        A(f"buffer_load_dwordx4 {v(vL16)}, {s(SWS,4)}, {s(soff)} offen sc1 lds")
        A(f"buffer_load_dwordx4 {v(vL16)}, {s(SWS,4)}, {s(soff)} offen offset:1024 sc1 lds")

    def smf(d, aop, bop): A(f"v_smfmac_f32_16x16x64_bf16 {v(d,4)}, {aop}, {bop}, {v(vIDX)}")
    def mf(d, aop, bop, c): A(f"v_mfma_f32_16x16x32_bf16 {v(d,4)}, {v(aop,4)}, {v(bop,4)}, {c}")
    KB = [RA+16, RA+24, RKX, RKX+8, RKX+16, RKX+24, RKX+32, RKX+40, RKX, RKX+8, RKX+16, RKX+24]
    def kbuf(i): return KB[i]

    A(f"s_lshl_b32 {s(sKXL)}, {W}, 11")
    A(f"s_add_u32 {s(sKXL)}, {s(sKXL)}, {L_KX}")
    A(f"s_mov_b32 {s(sCSC+1)}, {s(sCSC)}")
    A(f"s_lshl_b32 {s(sT0)}, {W}, 10")
    A(f"s_add_u32 {s(sKM)}, {s(sT0)}, {s(sKVM)}")
    A(f"s_mov_b32 {s(sONE)}, 0x3f803f80")
    A(f"s_mov_b32 {s(sONE+1)}, 0x3f803f80")
    A(f"s_lshl_b32 {s(sXO)}, {W}, 8")
    A("v_and_b32 v16, 4, v0")
    A("v_cmp_eq_u32 vcc, 0, v16")
    A("v_mov_b32 v17, 0x3f80")
    A("v_mov_b32 v18, 0x3f800000")
    A(f"v_cndmask_b32 {v(vSEL)}, v18, v17, vcc")
    A("v_and_b32 v16, 11, v0")
    for r in range(4):
        A(f"v_cmp_eq_u32 {s(sSELM+2*r,2)}, {8*(r>>1) + (r&1)}, v16")
    A(f"v_lshlrev_b32 v0, 3, v0")
    T0, T1, T2 = RS_, RS_ + 4, RS_ + 8
    G, SEL, H0, WT = RA + 8, T0, T1, vFLAG
    M, M2 = RT, RT + 1
    lg = lambda n: f"s_waitcnt lgkmcnt({n})"
    def kwr(i, hb):
        base, off = (vWA, i * 8192) if i < 8 else (vWB, (i - 8) * 8192)
        return f"ds_read_b128 {v(kbuf(i)+4*hb,4)}, {v(base)} offset:{off + hb*1024}"
    zero_acc = [f"v_mov_b64 {v(r,2)}, 0" for r in range(RK, RV + 8, 2)]
    kpre = [kwr(i, hb) for i in range(8) for hb in range(2)]
    def step_scalars():
        A(f"s_add_u32 {s(sVX)}, {s(sKVX)}, 8192")
        A(f"s_add_u32 {s(sTC2)}, {s(sKVX)}, {s(sTCH)}")
        if 'nokvx' not in OPT: A(f"s_add_u32 {s(sKVX)}, {s(sKVX)}, 0x80000")
        A(f"s_add_u32 {s(sFS)}, {s(sSTEP)}, 2")
        A(f"s_min_u32 {s(sFS)}, {s(sFS)}, 63")
    def dma2(soff):
        return [f"buffer_load_dwordx4 {v(vL16)}, {s(SWS,4)}, {s(soff)} offen sc1 lds",
                f"buffer_load_dwordx4 {v(vL16)}, {s(SWS,4)}, {s(soff)} offen offset:1024 sc1 lds"]
    def pol2(soff):
        return [f"buffer_load_dwordx4 {v(vP)}, {s(SWS,4)}, {s(soff)} offen sc1 lds",
                f"buffer_load_dwordx4 {v(vP)}, {s(SWS,4)}, {s(soff+1)} offen offset:1024 sc1 lds"]
    cr = lambda a_: [f"ds_read_b128 {v(RA+8*a_+4*b,4)}, {v(vL16)} offset:{L_MEM + a_*2048 + b*1024}" for b in range(2)]
    def chk(R, exact=False):
        o = [f"v_max3_u32 {v(WT)}, {v(R)}, {v(R+1)}, {v(R+2)}", f"v_max3_u32 {v(WT)}, {v(WT)}, {v(R+3)}, {v(R+4)}",
             f"v_max3_u32 {v(WT)}, {v(WT)}, {v(R+5)}, {v(R+6)}"]
        if exact: return o + [f"v_max_u32 {v(WT)}, {v(WT)}, {v(R+7)}", f"v_cmp_eq_u32 vcc, {SENT}, {v(WT)}"]
        return o + [f"v_cmp_u_f32 vcc, {v(WT)}, {v(R+7)}"]
    def watch(name, lok, R, body):
        A.label(name)
        for b_ in body:
            for x in chk(R) + b_: A(x)
            A(f"s_cbranch_vccz {lok}")
        A(f"s_sub_u32 {s(sBD2)}, {s(sBD2)}, 1")
        A(f"s_cbranch_scc0 {name}")
        A(f"s_movk_i32 {s(sBD2)}, 32")
        for x in chk(R, True) + body[0]: A(x)
        A(f"s_cbranch_vccz {lok}")
        A(f"s_sub_u32 {s(sBUD)}, {s(sBUD)}, 64")
        A(f"s_cbranch_scc0 {name}")
        A(f"s_mov_b32 {s(sBUD)}, 0")
        A(f"s_branch {lok}")
    kv_wait(0)
    A(f"s_mov_b32 m0, {s(sKXL)}")
    k_dma(sKVX)
    kv_wait(1)
    A(f"s_xor_b32 {s(sH1R)}, {s(sH1L)}, 0x40000")
    step_scalars()
    A(f"s_add_u32 {s(sH2P)}, {s(sH2)}, {s(sCLS)}")
    p2l = [f"buffer_load_dwordx4 {v(RA+4*i,4)}, {v(vP)}, {s(SWS,4)}, {s(sH2P)} offen offset:{i*2048} sc1" for i in range(2)]
    A(p2l[0]); A(p2l[1])
    A(f"s_movk_i32 {s(sBD2)}, 32")
    A("s_waitcnt vmcnt(0) lgkmcnt(0)")
    for x in kpre + zero_acc: A(x)
    if prof:
        A("s_memtime s[16:17]")
        A("s_memrealtime s[46:47]")
        A("s_waitcnt lgkmcnt(0)")
        A("s_mov_b32 s48, s16"); A("s_mov_b32 s49, s46"); A("s_mov_b32 s50, 0"); A("s_mov_b32 s51, 0")
    if 'tl' in OPT:
        A(f"s_lshl_b32 s48, {H}, 2")
        A(f"s_add_u32 s48, s48, {W}")
        A("s_lshl_b32 s48, s48, 10")
        A(f"s_add_u32 s48, s48, {WS_PROF}")
        A("s_memrealtime s[44:45]")
        A(lg(0))
        A(f"v_mov_b32 {v(RVX)}, s44")
        A(f"v_mov_b32 {v(RVX+1)}, s4")
        A(f"buffer_store_dwordx2 {v(RVX,2)}, off, {s(SWS,4)}, s48")
        A(f"v_mov_b32 {v(RVX)}, s49")
        A(f"v_mov_b32 {v(RVX+1)}, s50")
        A(f"buffer_store_dwordx2 {v(RVX,2)}, off, {s(SWS,4)}, s48 offset:1000")
    A(lg(0))
    A.label("L_p2ok")
    stamp(0)
    def mq(t, j): smf(RQ + 4*t, v(RA+4*j,4), rtxt(team_opnd('Q', t, j),0,8))
    def mk(t, j):
        loc = team_opnd('K', t, j)
        smf(RK + 4*t, v(RA+4*j,4), rtxt(loc,0,8) if loc else v(kbuf(2*j+t),8))
    def mv(t, j): smf(RV + 4*t, v(RA+4*j,4), rtxt(team_opnd('V', t, j),0,8))
    run_n = [0]
    def run(ms, gaps):
        run_n[0] += 1
        for x in fstamp(run_n[0]): A(x)
        for i, (f_, t_, j_) in enumerate(ms):
            f_(t_, j_)
            for x in gaps.get(i, ()): A(x)
            if (i + 1) % FSTEP == 0 or i == len(ms) - 1:
                for x in fstamp(run_n[0]): A(x)
        assert all(k < len(ms) for k in gaps)
    qk = lambda j: [(mq, 0, j), (mk, 0, j), (mq, 1, j), (mk, 1, j)]
    vv = lambda j: [(mv, 0, j), (mv, 1, j)]
    kx = [f"ds_read_b128 {v(RKX+4*i,4)}, {v(vL16)} offset:{L_KX + i*1024}" for i in range(8)]
    def comb(t):
        return [f"v_add_f32 {v(RQ+4*t)}, {v(RQ+4*t)}, {v(RQ+4*t+2)}", f"v_add_f32 {v(RQ+4*t+1)}, {v(RQ+4*t+1)}, {v(RQ+4*t+3)}",
                f"v_add_f32 {v(RK+4*t)}, {v(RK+4*t)}, {v(RK+4*t+2)}", f"v_add_f32 {v(RK+4*t+1)}, {v(RK+4*t+1)}, {v(RK+4*t+3)}",
                f"v_cvt_pk_bf16_f32 {v(RK+4*t)}, {v(RK+4*t)}, {v(RK+4*t+1)}",
                f"v_cvt_pk_bf16_f32 {v(RK+4*t+1)}, {v(RQ+4*t)}, {v(RQ+4*t+1)}",
                f"ds_write_b64 {v(vQKW)}, {v(RK+4*t,2)} offset:{t*128}"]
    c0, c1 = comb(0), comb(1)
    A(f"ds_write_b128 {v(vMW)}, {v(RA,4)} offset:{L_MEM}")
    A(f"ds_write_b128 {v(vMW)}, {v(RA+4,4)} offset:{L_MEM+1024}")
    run([(mq,0,0),(mq,1,0),(mk,0,0),(mk,1,0)] + vv(0),
        {0: [f"buffer_load_dwordx4 {v(RVX,4)}, {v(vL16)}, {s(SWS,4)}, {s(sVX)} offen sc1"],
         1: [f"buffer_load_dwordx4 {v(RVX+4,4)}, {v(vL16)}, {s(SWS,4)}, {s(sVX)} offen offset:1024 sc1", lg(2)],
         2: [f"v_lshlrev_b32 {v(vFLAG)}, 2, {v(vL16)}"],
         5: [lg(0), "s_barrier"]})
    stamp(1)
    mr = [f"ds_read_b128 {v(RA+(2*p+b)*4,4)}, {v(r)} offset:{L_MEM + b*1024}" for p, r in ((1, vMR1), (2, vMR2), (3, vMR3)) for b in range(2)]
    A(mr[0])
    g = {i: [] for i in range(34)}
    g[0] += [mr[1]]
    g[1] += [f"buffer_load_dword {v(vFLAG)}, {v(vFLAG)}, {s(SWS,4)}, {s(sTC2)} offen sc1"]
    g[2] += [mr[2]]; g[3] += [mr[3]]; g[4] += [kwr(8, 0), lg(4)]
    g[5] += [kwr(8, 1)]; g[6] += [kwr(9, 0)]; g[7] += [kwr(9, 1)]; g[8] += [mr[4], lg(5)]
    g[9] += [mr[5]]; g[10] += [kwr(10, 0)]; g[11] += [kwr(10, 1)]; g[12] += [kwr(11, 0), lg(5)]
    g[13] += [kwr(11, 1), f"v_lshrrev_b32 {v(RT)}, 2, {v(vL16)}"]
    g[14] += [f"buffer_load_dword {v(vFLAG)}, {v(RT)}, {s(SWS,4)}, {s(sFL)} offen sc1"]
    g[15] += [kx[0]]; g[16] += [kx[1], lg(4)]
    g[17] += [kx[2], f"v_mov_b64 {v(RT,2)}, -1"]; g[18] += [kx[3], f"v_mov_b64 {v(RT+2,2)}, -1"]
    g[19] += [kx[4], lg(5)]; g[20] += [kx[5]]; g[21] += [kx[6]]; g[22] += [kx[7]]
    rs = [f"buffer_store_dwordx4 {v(RT,4)}, {v(vP)}, {s(SWS,4)}, {s(sH1R)} offen offset:{i*2048}" for i in range(2)]
    if RSM == 0:
        g[23] += [rs[0]]; g[31] += [rs[1]]
    g[24] += [f"s_waitcnt vmcnt({3 if RSM == 0 else 2})"]
    g[31] += [f"v_mov_b32 {v(RA)}, {v(RK)}"]; g[32] += [f"v_mov_b32 {v(RA+1)}, {v(RK+4)}"]
    g[25] += [c0[0]]; g[26] += [c0[1]]; g[27] += [c0[2]]; g[28] += [c0[3], c0[4], c0[5]]
    g[29] += [c0[6], c1[0], c1[1]]
    g[30] += c1[2:]
    g[33] += [lg(0), "s_barrier"]
    run(qk(1) + [(mv,0,1)] + qk(2) + qk(3) + qk(4) + qk(5) +
        [(mq,0,6),(mk,0,6),(mq,0,7),(mk,0,7),(mq,1,6),(mq,1,7),(mk,1,6),(mk,1,7)] + [(mv,1,1)] + vv(2) + vv(3), g)
    stamp(2)
    xr = [f"ds_read_b64_tr_b16 {v(RX+4*ks+2*q,2)}, {v(vXR)} offset:{(32*ks+16*q)*8}" for ks in range(4) for q in range(2)]
    A(xr[0]); A(xr[1])
    g = {i: [xr[2+i]] for i in range(6)}
    kd = dma2(sKVX)
    g[6] = [kd[0]]
    g[7] = [kd[1], lg(2)]
    run(vv(4) + vv(5) + vv(6) + vv(7), g)
    stamp(3)
    O0, O1, LL = RX + 8, RX + 12, T2
    ONE, PM = RKX, RKX + 4
    obuf = lambda i: (RA + 8 + 8*i) if i < 3 else RKX + 8
    wo = [f"ds_read_b128 {v(obuf(i)+4*hb,4)}, {v(vWB)} offset:{(4+i)*8192 + hb*1024}" for i in range(4) for hb in range(2)]
    def ms(T, ks):
        aop = {T2: RX + 4*ks, T0: RKX + 4*ks, T1: RKX + 16 + 4*ks}[T]
        mf(T, aop, RX + 4*ks, "0" if ks == 0 else v(T,4))
    g = {0: [wo[0]],
         1: [f"v_add_f32 {v(RV)}, {v(RV)}, {v(RV+2)}", f"v_add_f32 {v(RV+1)}, {v(RV+1)}, {v(RV+3)}"],
         2: [lg(1), f"v_add_f32 {v(RV+4)}, {v(RV+4)}, {v(RV+6)}", f"v_add_f32 {v(RV+5)}, {v(RV+5)}, {v(RV+7)}"],
         3: [f"v_cvt_pk_bf16_f32 {v(RA+2)}, {v(RV)}, {v(RV+1)}", f"v_cvt_pk_bf16_f32 {v(RA+3)}, {v(RV+4)}, {v(RV+5)}"],
         4: [f"buffer_store_dwordx4 {v(RA,4)}, {v(vL16)}, {s(SWS,4)}, {s(sKM)} offen sc1"],
         5: [f"s_cmp_eq_u32 {s(sSTEP)}, {nsteps-1}", f"v_mov_b32 {v(RV)}, {v(RA+2)}", f"v_mov_b32 {v(RV+4)}, {v(RA+3)}"],
         6: ["s_cbranch_scc1 L_team_done", f"v_mov_b64 {v(RV+2,2)}, 0"],
         7: [wo[1], f"v_mov_b32 {v(RV+1)}, 0"],
         8: [wo[2], f"v_mov_b32 {v(RV+5)}, 0"],
         9: [wo[3], f"v_mov_b64 {v(RV+6,2)}, 0"],
         10: [f"v_mov_b64 {v(ONE,2)}, {s(sONE,2)}", f"v_max3_f32 {v(M)}, {v(T2)}, {v(T2+1)}, {v(T0)}"],
         11: [f"v_max3_f32 {v(M2)}, {v(T0+1)}, {v(T0+2)}, {v(T0+3)}", f"v_mov_b64 {v(ONE+2,2)}, {s(sONE,2)}",
              f"v_mov_b32 {v(PM+1)}, 0", f"v_mov_b64 {v(PM+2,2)}, 0", f"v_max_f32 {v(M)}, {v(M)}, {v(M2)}"]}
    run([(ms, T, ks) for T in (T2, T0, T1) for ks in range(4)], g)
    stamp(4)
    A(f"v_max3_f32 {v(M)}, {v(M)}, {v(T1)}, {v(T1+1)}")
    A(f"v_max3_f32 {v(M2)}, {v(M)}, {v(T1+2)}, {v(T1+3)}")
    A(f"v_max3_f32 {v(M)}, {v(M)}, {v(T1+2)}, {v(T1+3)}")
    A(f"v_permlane32_swap_b32 {v(M)}, {v(M2)}")
    A(f"v_max_f32 {v(RT+3)}, {v(M)}, {v(M2)}")
    A(f"v_max_f32 {v(M)}, {v(M)}, {v(M2)}")
    A(f"v_permlane16_swap_b32 {v(M)}, {v(RT+3)}")
    A(f"v_max_f32 {v(M)}, {v(M)}, {v(RT+3)}")
    A(f"v_mul_f32 {v(M)}, {s(sCSC)}, {v(M)}")
    def pkf(r): A(f"v_pk_fma_f32 {v(r,2)}, {v(r,2)}, {s(sCSC,2)}, {v(M,2)} op_sel_hi:[1,1,0] neg_lo:[0,0,1] neg_hi:[0,0,1]")
    for r in (T2, T0, T0+2, T1, T1+2): pkf(r)
    ex = lambda r: A(f"v_exp_f32 {v(r)}, {v(r)}")
    ex(T2); ex(T2+1); ex(T0)
    A(f"v_cvt_pk_bf16_f32 {v(PM)}, {v(T2)}, {v(T2+1)}")
    ex(T0+1); ex(T0+2)
    mf(O0, RV, PM, "0")
    ex(T0+3)
    mf(O1, RV+4, PM, "0")
    ex(T0+4)
    mf(LL, ONE, PM, "0")
    ex(T0+5)
    A(f"v_cvt_pk_bf16_f32 {v(T0)}, {v(T0)}, {v(T0+1)}")
    ex(T0+6)
    A(f"v_cvt_pk_bf16_f32 {v(T0+1)}, {v(T0+2)}, {v(T0+3)}")
    ex(T0+7)
    A(f"v_cvt_pk_bf16_f32 {v(T0+2)}, {v(T0+4)}, {v(T0+5)}")
    A(f"v_cvt_pk_bf16_f32 {v(T0+3)}, {v(T0+6)}, {v(T0+7)}")
    stamp(5)
    oacc = [RV, RV + 4, RX, RX + 4]
    zl = [f"v_mov_b64 {v(r+h,2)}, 0" for r in oacc for h in (0, 2)]
    A(zl.pop(0)); A(zl.pop(0))
    mf(LL, ONE, T0, v(LL,4))
    A(wo[4]); A(zl.pop(0))
    mf(O0, RVX, T0, v(O0,4))
    A(wo[5]); A(zl.pop(0))
    mf(O1, RVX+4, T0, v(O1,4))
    A(wo[6])
    DUP = "quad_perm:[2,3,2,3] row_mask:0xf bank_mask:0xf"
    A(f"v_rcp_f32_dpp {v(M)}, {v(LL)} {DUP}")
    A(zl.pop(0)); A(zl.pop(0))
    for r in range(O0, O0 + 4): A(f"v_mul_f32_dpp {v(r)}, {v(r)}, {v(M)} {DUP}")
    A(f"v_cvt_pk_bf16_f32 {v(O0)}, {v(O0)}, {v(O0+1)}")
    A(f"v_cvt_pk_bf16_f32 {v(O0+1)}, {v(O0+2)}, {v(O0+3)}")
    for r in range(O1, O1 + 4): A(f"v_mul_f32_dpp {v(r)}, {v(r)}, {v(M)} {DUP}")
    A(f"v_cvt_pk_bf16_f32 {v(O0+2)}, {v(O1)}, {v(O1+1)}")
    A(f"v_cvt_pk_bf16_f32 {v(O0+3)}, {v(O1+2)}, {v(O1+3)}")
    A(f"ds_write_b128 {v(vMW)}, {v(O0,4)} offset:{L_O}")
    stamp(6)
    OA = [O0, O1, RVX, RVX + 4]
    def mo(a_, i):
        loc = team_opnd('O', a_, i)
        smf(oacc[a_], v(OA[i],4), rtxt(loc,0,8) if loc else v(obuf(OSEQ.index((a_, i))),8))
    oar = [f"ds_read_b128 {v(OA[p],4)}, {v(r)} offset:{L_O}" for p, r in ((1, vMR1), (2, vMR2), (3, vMR3))]
    def o_fin(a_):
        x = oacc[a_]
        return [f"v_cvt_pk_bf16_f32 {v(x)}, {v(x)}, {v(x+1)}",
                f"v_cvt_pk_bf16_f32 {v(x+1)}, {v(x+2)}, {v(x+3)}",
                f"buffer_store_dwordx2 {v(x,2)}, {v(vH1S)}, {s(SWS,4)}, {s(sH1S0+(a_>>1))} offen offset:{(a_&1)*128}"]
    arm = lambda R: [f"v_mov_b64 {v(R+i,2)}, -1" for i in range(0, 8, 2)]
    sl = [f"v_cndmask_b32 {v(SEL+i)}, 0, {v(vSEL)}, {s(sSELM+2*i,2)}" for i in range(4)]
    DSC = '' if 'plaindma' in OPT else 'sc1'
    A(lg(2))
    ag, aa = arm(G), arm(RA)
    f0, f1, f2, f3 = o_fin(0), o_fin(1), o_fin(2), o_fin(3)
    g = {0: [wo[7], zl[0]], 1: [zl[1]], 2: [ag[0], ag[1], ag[2], lg(0), "s_barrier"] + oar,
         3: [ag[3], sl[0], sl[1], sl[2], sl[3], lg(2)],
         4: [lg(1), aa[0]], 5: [lg(0), aa[1]], 6: [aa[2]], 7: [aa[3]], 8: [f0[0], f0[1]], 9: [f0[2]],
         11: [f1[0], f1[1]], 12: [f1[2]], 14: [f2[0], f2[1]], 15: [f2[2]] + f3}
    if 'c0only' in OPT:
        for k_ in g: g[k_] = [x for x in g[k_] if x not in (f1[2], f2[2], f3[2])]
    run([(mo, a_, i) for a_, i in OSEQ], g)
    stamp(7)
    p1l = [f"buffer_load_dwordx4 {v(G+4*i,4)}, {v(vP)}, {s(SWS,4)}, {s(sH1L)} offen offset:{i*2048} sc1" for i in range(2)]
    spec1 = [f"v_mfma_f32_16x16x32_bf16 {v(H0,4)}, {v(SEL,4)}, {v(G,4)}, 0",
             f"v_mfma_f32_16x16x32_bf16 {v(H0,4)}, {v(SEL,4)}, {v(G+4,4)}, {v(H0,4)}"]
    def tail():
        keep = f"v_mov_b32 {v(WT)}, 0"
        A("s_waitcnt vmcnt(5)")
        A(f"v_cmp_ne_u32 {s(sRDY,2)}, {SENT}, {v(vFLAG)}")
        for i in range(12):
            if S1 >> i & 1:
                A(p1l[0]); A(p1l[1])
            if i < K1: A(kpre[i])
            A(zero_acc[i])
        A(f"s_bitcmp1_b64 {s(sRDY,2)}, {s(sFS)}")
        A("s_cbranch_scc0 L_kvslow")
        A.label("L_kvback")
        A(f"s_xor_b32 {s(sH2P)}, {s(sH2P)}, 0x2000")
        A(f"s_xor_b32 {s(sT0)}, {s(sH2N)}, 0x2000")
        stamp(8)
        watch("L_p1", "L_p1ok", G, [spec1 + (p1l if ch == '1' else []) for ch in PAT1])
        A.label("L_p1ok")
        stamp(9)
        A("s_nop 6")
        ROR = lambda n: f"row_ror:{n} row_mask:0xf bank_mask:0xf"
        A(f"v_add_f32_dpp {v(H0)}, {v(H0)}, {v(H0)} {ROR(8)}")
        A(f"v_add_f32_dpp {v(H0+1)}, {v(H0+1)}, {v(H0+1)} {ROR(8)}")
        A(f"s_mov_b32 {s(sH1R)}, {s(sH1L)}")
        A(f"v_add_f32_dpp {v(H0)}, {v(H0)}, {v(H0)} {ROR(4)}")
        A(f"v_add_f32_dpp {v(H0+1)}, {v(H0+1)}, {v(H0+1)} {ROR(4)}")
        A(f"v_cvt_pk_bf16_f32 {v(H0)}, {v(H0)}, {v(H0+1)}")
        A(f"buffer_store_dword {v(H0)}, {v(vH2S)}, {s(SWS,4)}, {s(sH2N)} offen")
        stamp(10)
        A(f"buffer_store_dword {v(RA)}, {v(vH2S)}, {s(SWS,4)}, {s(sT0)} offen")
        if RSM == 1:
            for i in range(2): A(f"buffer_store_dwordx4 {v(RA,4)}, {v(vP)}, {s(SWS,4)}, {s(sH1L)} offen offset:{i*2048}")
        sc = [f"s_mov_b32 {s(sH2N)}, {s(sT0)}", f"s_xor_b32 {s(sH1L)}, {s(sH1L)}, 0x40000",
              f"s_xor_b32 {s(sH1S0)}, {s(sH1S0)}, 0x40000", f"s_xor_b32 {s(sH1S0+1)}, {s(sH1S0+1)}, 0x40000",
              f"s_add_u32 {s(sKM)}, {s(sKM)}, 0x20000",
              f"s_add_u32 {s(sSTEP)}, {s(sSTEP)}, 1"]
        for i, x in enumerate(kpre[K1:]):
            if S2 >> i & 1:
                A(p2l[0]); A(p2l[1])
            A(x)
            if sc: A(sc.pop(0))
            A(keep)
        for x in sc: A(x)
        step_scalars()
        stamp_end(11)
        if 'tl' in OPT:
            A("s_memrealtime s[44:45]")
            A("s_memtime s[46:47]")
            A(f"s_lshl_b32 {s(sT1)}, {s(sSTEP)}, 3")
            A(f"s_add_u32 {s(sT1)}, {s(sT1)}, s48")
            A(lg(0))
            A(f"v_mov_b32 {v(RVX)}, s44")
            A(f"v_mov_b32 {v(RVX+1)}, s46")
            A(f"buffer_store_dwordx2 {v(RVX,2)}, off, {s(SWS,4)}, {s(sT1)}")
        watch("L_p2", "L_p2ok", RA, [(p2l if ch == '1' else []) for ch in PAT2])
    tail()
    A.label("L_kvslow")
    kv_wait(2)
    A("s_branch L_kvback")
    A.label("L_team_done")
    if prof:
        A(f"s_lshl_b32 {s(sT0)}, {H}, 2")
        A(f"s_add_u32 {s(sT0)}, {s(sT0)}, {W}")
        A(f"s_lshl_b32 {s(sT0)}, {s(sT0)}, 7")
        A(f"s_add_u32 {s(sT0)}, {s(sT0)}, {WS_PROF}")
        A("v_mov_b32 v16, 0")
        A("s_memrealtime s[38:39]")
        A("s_waitcnt lgkmcnt(0)")
        for i, r in enumerate((44, 46, 48, 49, 50, 51, 38, 4)): A(f"s_mov_b32 {s(sPROF+12+i)}, s{r}")
        for i in range(20):
            A(f"v_mov_b32 v17, {s(sPROF+i)}")
            A(f"buffer_store_dword v17, v16, {s(SWS,4)}, {s(sT0)} offen offset:{4*i}")
    A("s_waitcnt vmcnt(0)")
    A("s_endpgm")

def build(prof=False, team_only=False):
    A = Asm()
    prologue(A)
    A(f"s_cmp_eq_u32 {s(sXCC)}, 0")
    A("s_cbranch_scc1 L_team")
    if team_only:
        A("s_endpgm")
    else:
        import worker
        worker.worker(A, sys.modules[__name__])
    team(A, prof=prof)
    A.label("L_end")
    A("s_endpgm")
    body = A.finish()
    hdr = open("cdna_kernels/" + NAME + ".s.ref").read().split("; Override launch")[0]
    txt = hdr + f"""; @launch grid=(256,1,1) block=(256,1,1) lds=163840
.amdgcn_target "amdgcn-amd-amdhsa--gfx950"
.text
.globl {KN}
.p2align 8
.type {KN},@function
{KN}:
{body}.section .rodata,"a"
.p2align 6
.amdhsa_kernel {KN}
  .amdhsa_next_free_vgpr 512
  .amdhsa_next_free_sgpr 102
  .amdhsa_accum_offset 256
  .amdhsa_group_segment_fixed_size 0
  .amdhsa_kernarg_size 112
  .amdhsa_user_sgpr_count 2
  .amdhsa_user_sgpr_kernarg_segment_ptr 1
  .amdhsa_system_sgpr_workgroup_id_x 1
  .amdhsa_float_denorm_mode_32 3
.end_amdhsa_kernel
"""
    return txt

if __name__ == "__main__":
    out = sys.argv[1]
    txt = build(prof="prof" in sys.argv[2:], team_only="team" in sys.argv[2:])
    open(out, "w").write(txt)
```

```python
from asmlib import *

def worker(A, G):
    g_ = G.__dict__
    (SX, SWS, SDBG, SWQ, SWK, SWV, SWO, SWG, SWU, SWD, SOUT) = [g_[k] for k in
        "SX SWS SDBG SWQ SWK SWV SWO SWG SWU SWD SOUT".split()]
    sT0, sT1, sT2, sT3, sBUD = G.sT0, G.sT1, G.sT2, G.sT3, G.sBUD
    W, H, X = s(G.sWAVE), s(G.sRANK), s(G.sXCC)
    ISTR, SENT = G.ISTR, G.SENT
    sREP, sSEG, sBUF, sRSB, sA, sB, sC, sD, sHM, sCS = 60, 61, 62, 63, 64, 65, 66, 67, 68, 70
    sRO = 72
    sE, sF = 80, 81
    vL16, vR16, vG, vL8 = 2, 3, 4, 5
    lg = lambda n: f"s_waitcnt lgkmcnt({n})"
    L_XT, L_OI = 98304, 0
    def mf(d, aop, bop, c): A(f"v_mfma_f32_16x16x32_bf16 {d}, {aop}, {bop}, {c}")
    LISTS = [[0, 2, 4, 6, 8], [1, 3, 5, 7, 9]] + [[] for _ in range(5)]
    for sg in range(10, 35): LISTS[2 + (sg - 10) % 5].append(sg)
    for sg in range(35, 64): LISTS[(sg - 35 + 1) % 7 if sg < 63 else 1].append(sg)
    assert sorted(sum(LISTS, [])) == list(range(64)) and max(map(len, LISTS)) <= 10 and min(map(len, LISTS)) >= 9, LISTS
    G.SEGLISTS = LISTS
    sLST, sCUR, sNS, sIT, sPRV, sTHR = 82, 88, 90, 91, 92, 93
    def seg_loop(name, body):
        A(f"s_mov_b64 {s(sCUR,2)}, {s(sLST,2)}")
        A(f"s_mov_b32 {s(sIT)}, 0")
        A.label(name)
        A(f"s_and_b32 {s(sSEG)}, {s(sCUR)}, 63")
        A(f"s_lshr_b64 {s(sCUR,2)}, {s(sCUR,2)}, 6")
        body()
        A(f"s_mov_b32 {s(sPRV)}, {s(sSEG)}")
        A(f"s_add_u32 {s(sIT)}, {s(sIT)}, 1")
        A(f"s_cmp_lt_u32 {s(sIT)}, {s(sNS)}")
        A(f"s_cbranch_scc1 {name}")

    tl = 'tl' in G.OPT
    def wst(k):
        if not tl: return
        A("s_memrealtime s[94:95]")
        A("s_waitcnt lgkmcnt(0)")
        A("v_mov_b32 v15, s94")
        A(f"buffer_store_dword v15, off, {s(SWS,4)}, s86 offset:{4*k}")
    def wst_seg(k):
        if not tl: return
        A("s_memrealtime s[94:95]")
        A(f"s_lshl_b32 s87, {s(sSEG)}, 2")
        A("s_add_u32 s87, s87, s86")
        A("s_waitcnt lgkmcnt(0)")
        A("v_mov_b32 v15, s94")
        A(f"buffer_store_dword v15, off, {s(SWS,4)}, s87 offset:{256*k}")
    A.label("L_worker")
    if tl:
        A(f"s_lshl_b32 s86, {X}, 5")
        A(f"s_add_u32 s86, s86, {H}")
        A("s_lshl_b32 s86, s86, 2")
        A(f"s_add_u32 s86, s86, {W}")
        A("s_lshl_b32 s86, s86, 10")
        A(f"s_add_u32 s86, s86, {G.WS_PROF}")
        A("v_mov_b32 v15, s96")
        A(f"buffer_store_dword v15, off, {s(SWS,4)}, s86")
    A(f"s_sub_u32 {s(sREP)}, {X}, 1")
    for r, l in enumerate(LISTS):
        w64 = sum(sg << (6 * i) for i, sg in enumerate(l))
        if r == 0:
            A(f"s_mov_b32 {s(sLST)}, {w64 & 0xffffffff:#x}"); A(f"s_mov_b32 {s(sLST+1)}, {w64 >> 32:#x}"); A(f"s_mov_b32 {s(sNS)}, {len(l)}")
        else:
            A(f"s_cmp_eq_u32 {s(sREP)}, {r}")
            A(f"s_cselect_b32 {s(sLST)}, {w64 & 0xffffffff:#x}, {s(sLST)}")
            A(f"s_cselect_b32 {s(sLST+1)}, {w64 >> 32:#x}, {s(sLST+1)}")
            A(f"s_cselect_b32 {s(sNS)}, {len(l)}, {s(sNS)}")
    A(f"s_cmp_ge_u32 {s(sREP)}, {G.NEARLY}")
    A(f"s_cselect_b32 {s(sTHR)}, 1, 0")
    A(f"v_lshlrev_b32 {v(vL16)}, 4, v0")
    A(f"v_and_b32 {v(vR16)}, 15, v0")
    A(f"v_lshrrev_b32 {v(vG)}, 4, v0")
    A(f"v_lshlrev_b32 {v(vL8)}, 3, v0")
    A(f"v_and_b32 v18, 1, {v(vG)}")
    A("v_lshlrev_b32 v25, 3, v18")
    A(f"v_xor_b32 v25, v25, {v(vR16)}")
    A("v_lshlrev_b32 v25, 4, v25")
    A(f"v_lshl_add_u32 v25, {v(vG)}, 16, v25")
    A(f"s_lshl_b32 {s(sT0)}, {W}, 20")
    A(f"s_lshl_b32 {s(sT1)}, {H}, 8")
    A(f"s_add_u32 {s(sT0)}, {s(sT0)}, {s(sT1)}")
    A(f"v_add_u32 v6, {s(sT0)}, v25")
    A("v_bfe_u32 v25, v0, 2, 2")
    A(f"v_mul_u32_u24 v25, {ISTR}, v25")
    A(f"v_lshl_add_u32 v25, {v(vG)}, 8, v25")
    A("v_and_b32 v26, 3, v0")
    A("v_lshlrev_b32 v27, 7, v18")
    A(f"s_lshl_b32 {s(sT0)}, {W}, 6")
    A(f"v_xor_b32 v27, {s(sT0)}, v27")
    A("v_lshl_add_u32 v27, v26, 3, v27")
    A("v_add_u32 v7, v27, v25")
    A(f"v_lshlrev_b32 v27, 12, {v(vG)}")
    A(f"v_lshl_add_u32 v27, {v(vR16)}, 4, v27")
    A(f"s_lshl_b32 {s(sT0)}, {W}, 8")
    A(f"v_add_u32 v8, {s(sT0)}, v27")
    A("v_lshl_add_u32 v27, v26, 3, v25")
    A(f"s_lshl_b32 {s(sT0)}, {W}, 10")
    A(f"v_add_u32 v9, {s(sT0)}, v27")
    A("v_bfe_u32 v27, v0, 3, 1")
    A(f"v_lshl_add_u32 v27, {v(vG)}, 3, v27")
    A(f"s_lshl_b32 {s(sT0)}, {W}, 7")
    A(f"v_add_u32 v27, {s(sT0)}, v27")
    A("v_mul_u32_u24 v27, 2752, v27")
    A("v_and_b32 v28, 7, v0")
    A("v_lshl_add_u32 v27, v28, 4, v27")
    A(f"s_lshl_b32 {s(sT0)}, {H}, 7")
    A(f"v_add_u32 v10, {s(sT0)}, v27")
    A("v_bfe_u32 v27, v0, 3, 1")
    A(f"v_mul_u32_u24 v27, {ISTR}, v27")
    A(f"v_lshl_add_u32 v27, {v(vG)}, 8, v27")
    A("v_bfe_u32 v28, v0, 2, 1")
    A("v_lshl_add_u32 v27, v28, 7, v27")
    A("v_lshl_add_u32 v27, v26, 3, v27")
    A(f"s_lshl_b32 {s(sT0)}, {W}, 5")
    A(f"v_add_u32 v11, {s(sT0)}, v27")
    A(f"v_lshlrev_b32 v27, 10, {v(vG)}")
    A(f"v_lshl_add_u32 v27, {v(vR16)}, 4, v27")
    A(f"s_lshl_b32 {s(sT0)}, {W}, 8")
    A(f"v_add_u32 v12, {s(sT0)}, v27")
    A(f"s_lshl_b32 {s(sRSB)}, {s(sREP)}, 21")
    A(f"s_add_u32 {s(sRSB)}, {s(sRSB)}, {G.WS_RS}")

    def proj_chunks(srd, tile0):
        out = []
        for b in range(2):
            for hb in range(2):
                for q in range(2):
                    reads = []
                    for p in range(4):
                        for t in range(2):
                            dst = a(((tile0 + t) * 16 + 4*p + 2*b + hb) * 4 + 2*q, 2)
                            reads.append(lambda R, dst=dst, p=p, t=t: f"ds_read_b64_tr_b16 {dst}, v7 offset:{R + p*1024 + t*32}")
                    out.append(dict(srd=srd, voff=6, soff=[(64*b + 32*hb + 4*q + rr) * 8192 for rr in range(4)], reads=reads))
        return out

    def init_work(A):
        A("v_lshrrev_b32 v36, 2, v0")
        A("v_lshlrev_b32 v36, 10, v36")
        A("v_and_b32 v37, 3, v0")
        A("v_lshl_add_u32 v36, v37, 8, v36")
        A(f"s_lshr_b32 {s(sA)}, {H}, 4")
        A(f"s_lshl_b32 {s(sA)}, {s(sA)}, 14")
        A(f"s_and_b32 {s(sB)}, {H}, 15")
        A(f"s_lshl_b32 {s(sB)}, {s(sB)}, 4")
        A(f"s_add_u32 {s(sC)}, {s(sA)}, {s(sB)}")
        A(f"s_mov_b32 {s(sIT)}, {W}")
        A(f"s_mov_b32 {s(sD)}, 0xffff0000")
        A("s_waitcnt vmcnt(16)")
        A.label("L_wk_ln")
        A(f"s_mul_i32 {s(sA)}, {s(sIT)}, 6")
        A(f"s_lshr_b64 {s(sCUR,2)}, {s(sLST,2)}, {s(sA)}")
        A(f"s_and_b32 {s(sSEG)}, {s(sCUR)}, 63")
        for i in range(4):
            A(f"v_mov_b32 {v(40+i)}, {v(60+i)}")
            A(f"v_mov_b32 {v(60+i)}, {v(64+i)}")
            A(f"v_mov_b32 {v(64+i)}, {v(68+i)}")
        for i in range(4):
            A(f"v_lshlrev_b32 {v(44+2*i)}, 16, {v(40+i)}")
            A(f"v_and_b32 {v(45+2*i)}, {s(sD)}, {v(40+i)}")
        def wsum(r, t):
            for n in (1, 2, 4, 8):
                A(f"v_add_f32_dpp {v(r)}, {v(r)}, {v(r)} row_ror:{n} row_mask:0xf bank_mask:0xf")
            for op in ("v_permlane16_swap_b32", "v_permlane32_swap_b32"):
                A(f"v_mov_b32 {v(t)}, {v(r)}")
                A(f"{op} {v(r)}, {v(t)}")
                A(f"v_add_f32 {v(r)}, {v(r)}, {v(t)}")
        A("v_add_f32 v52, v44, v45")
        for i in range(2, 8): A(f"v_add_f32 v52, v52, {v(44+i)}")
        wsum(52, 53)
        A("v_mul_f32 v52, 0x3b000000, v52")
        A("v_sub_f32 v54, v44, v52")
        A("v_mul_f32 v55, v54, v54")
        for i in range(1, 8):
            A(f"v_sub_f32 v54, {v(44+i)}, v52")
            A("v_fmac_f32 v55, v54, v54")
        wsum(55, 53)
        A("v_mul_f32 v55, 0x3b000000, v55")
        def rnd(r):
            A(f"v_cvt_pk_bf16_f32 {v(r)}, {v(r)}, {v(r)}")
            A(f"v_lshlrev_b32 {v(r)}, 16, {v(r)}")
        rnd(52); rnd(55)
        A("v_add_f32 v55, 0x3727c5ac, v55")
        rnd(55)
        A("v_sqrt_f32 v55, v55")
        rnd(55)
        A("v_rcp_f32 v55, v55")
        for i in range(4):
            A(f"v_sub_f32 {v(44+2*i)}, {v(44+2*i)}, v52")
            A(f"v_sub_f32 {v(45+2*i)}, {v(45+2*i)}, v52")
            A(f"v_cvt_pk_bf16_f32 {v(40+i)}, {v(44+2*i)}, {v(45+2*i)}")
            A(f"v_lshlrev_b32 {v(44+2*i)}, 16, {v(40+i)}")
            A(f"v_and_b32 {v(45+2*i)}, {s(sD)}, {v(40+i)}")
            A(f"v_mul_f32 {v(44+2*i)}, {v(44+2*i)}, v55")
            A(f"v_mul_f32 {v(45+2*i)}, {v(45+2*i)}, v55")
            A(f"v_cvt_pk_bf16_f32 {v(40+i)}, {v(44+2*i)}, {v(45+2*i)}")
        A(f"s_lshl_b32 {s(sA)}, {s(sSEG)}, 15")
        A(f"s_add_u32 {s(sA)}, {s(sA)}, {s(sC)}")
        A(f"buffer_store_dwordx4 v[40:43], v36, {s(SWS,4)}, {s(sA)} offen")
        A(f"s_add_u32 {s(sIT)}, {s(sIT)}, 4")
        A(f"s_cmp_lt_u32 {s(sIT)}, {s(sNS)}")
        A("s_cbranch_scc1 L_wk_ln")
    def signal(word_soff, val):
        l = A.newlabel("sig")
        A(f"s_cmp_lg_u32 {W}, 0")
        A(f"s_cbranch_scc1 {l}")
        A(f"v_mov_b32 v13, {val}")
        A("s_mov_b64 exec, 1")
        A(f"buffer_atomic_add v13, off, {s(SDBG,4)}, {word_soff} sc1")
        A("s_mov_b64 exec, -1")
        A.label(l)
    def first(A):
        signal(f"{s(G.sDB)} offset:{G.DBG_INIT*4}", 1)
    def wait_ctr(name, soff, word):
        A.label(name)
        A(f"buffer_load_dword v13, off, {s(SDBG,4)}, {soff} offset:{word*4} sc1")
        A("s_waitcnt vmcnt(0)")
        A("v_cmp_le_u32 vcc, 32, v13")
        A(f"s_cbranch_vccnz {name}ok")
        A("s_sleep 2")
        G.poll_budget(A, name, name + "ok")
        A.label(name + "ok")

    chunks = proj_chunks(SWK, 0) + proj_chunks(SWV, 2)
    chunks[4]['first'] = first
    if G.PRE >= 2:
        A(f"s_cmp_lt_u32 {s(sREP)}, {G.NEARLY}")
        A("s_cbranch_scc1 L_wk_nopre")
        nlate = (7 - G.NEARLY) * 128
        per = -(-4096 // nlate)
        A(f"s_sub_u32 {s(sA)}, {s(sREP)}, {G.NEARLY}")
        A(f"s_lshl_b32 {s(sA)}, {s(sA)}, 5")
        A(f"s_add_u32 {s(sA)}, {s(sA)}, {H}")
        A(f"s_lshl_b32 {s(sA)}, {s(sA)}, 2")
        A(f"s_add_u32 {s(sA)}, {s(sA)}, {W}")
        A(f"s_mul_i32 {s(sA)}, {s(sA)}, {per*1024}")
        for sr in ((SWK, SWV, SWQ, SWO) if G.PRE == 2 else (SWV, SWQ, SWO) if G.PRE == 3 else (SWQ, SWO)):
            for i in range(per):
                if i % 4 == 0: A(f"s_add_u32 {s(sB)}, {s(sA)}, {i*1024}")
                A(f"buffer_load_dwordx4 v[72:75], {v(vL16)}, {s(sr,4)}, {s(sB)} offen offset:{(i%4)*1024}")
            if G.PRE >= 3: A("s_waitcnt vmcnt(0)")
        A.label("L_wk_nopre")
    for i in range(3):
        A(f"s_add_u32 {s(sA)}, {W}, {4*i}")
        A(f"s_mul_i32 {s(sA)}, {s(sA)}, 6")
        A(f"s_min_u32 {s(sA)}, {s(sA)}, 60")
        A(f"s_lshr_b64 {s(sCUR,2)}, {s(sLST,2)}, {s(sA)}")
        A(f"s_and_b32 {s(sA)}, {s(sCUR)}, 63")
        A(f"s_lshl_b32 {s(sA)}, {s(sA)}, 5")
        A(f"s_add_u32 {s(sA)}, {s(sA)}, {H}")
        A(f"s_lshl_b32 {s(sA)}, {s(sA)}, 10")
        A(f"buffer_load_dwordx4 {v(60+4*i,4)}, {v(vL16)}, {s(SX,4)}, {s(sA)} offen")
    A(f"s_lshl_b32 {s(sT0)}, {W}, 10")
    G.run_loader(A, chunks, after_prime=init_work, throttle=sTHR)
    wst(1)
    wait_ctr("L_wk_iw", s(G.sDB), G.DBG_INIT)
    wait_ctr("L_wk_tw", "0", G.DBG_INIT)

    ACC, XF = 32, 64
    def xt_dma(segreg):
        A(f"s_lshl_b32 {s(sA)}, {segreg}, 15")
        A(f"s_lshl_b32 {s(sB)}, {W}, 13")
        A(f"s_add_u32 {s(sA)}, {s(sA)}, {s(sB)}")
        A(f"s_add_u32 {s(sB)}, {s(sB)}, {s(sBUF)}")
        for h2 in range(2):
            A(f"s_add_u32 m0, {s(sB)}, {h2*4096}")
            A(f"s_add_u32 {s(sC)}, {s(sA)}, {h2*4096}")
            for i in range(4):
                A(f"buffer_load_dwordx4 {v(vL16)}, {s(SWS,4)}, {s(sC)} offen offset:{i*1024} sc1 lds")
    def proj_pass(name, swap, epilogue, flag):
        A(f"s_mov_b32 {s(sBUF)}, {L_XT}")
        A(f"s_and_b32 {s(sD)}, {s(sLST)}, 63")
        xt_dma(s(sD))
        def body():
            A("s_waitcnt vmcnt(0)")
            A("s_barrier")
            if flag: flag_prev()
            if flag: wst_seg(1)
            A(f"v_add_u32 v14, {s(sBUF)}, {v(vL16)}")
            A(f"s_xor_b32 {s(sBUF)}, {s(sBUF)}, {L_XT ^ (L_XT + 32768)}")
            rd = lambda ks, rt: f"ds_read_b128 {v(XF + ((ks % 4)*2 + rt)*4, 4)}, v14 offset:{rt*16384 + ks*1024}"
            for ks in range(3):
                A(rd(ks, 0)); A(rd(ks, 1))
            A(f"s_and_b32 {s(sD)}, {s(sCUR)}, 63")
            xt_dma(s(sD))
            for ks in range(16):
                A(lg(4 if ks < 14 else (2 if ks == 14 else 0)))
                n = 0
                for rt in range(2):
                    for t in range(4):
                        d = v(ACC + (rt*4 + t)*4, 4)
                        wop, xop = a((t*16 + ks)*4, 4), v(XF + ((ks % 4)*2 + rt)*4, 4)
                        if t in swap: mf(d, xop, wop, "0" if ks == 0 else d)
                        else: mf(d, wop, xop, "0" if ks == 0 else d)
                        if n < 2 and ks + 3 < 16: A(rd(ks + 3, n))
                        n += 1
            epilogue()
        seg_loop(name, body)
        A("s_waitcnt vmcnt(0)")
        A("s_barrier")
        if flag: flag_prev()
    def flag_prev():
        l = A.newlabel("nf")
        A(f"s_cmp_eq_u32 {s(sIT)}, 0")
        A(f"s_cbranch_scc1 {l}")
        A(f"s_cmp_lg_u32 {W}, 0")
        A(f"s_cbranch_scc1 {l}")
        A(f"s_lshl_b32 {s(sA)}, {s(sPRV)}, 2")
        A(f"s_lshl_b32 {s(sB)}, {H}, 8")
        A(f"s_add_u32 {s(sA)}, {s(sA)}, {s(sB)}")
        A(f"s_add_u32 {s(sA)}, {s(sA)}, {G.WS_FLG}")
        A("v_mov_b32 v13, 1")
        A("s_mov_b64 exec, 1")
        A(f"buffer_store_dword v13, off, {s(SWS,4)}, {s(sA)} sc1")
        A("s_mov_b64 exec, -1")
        A.label(l)
    def pack8(dst, x, y):
        A(f"v_cvt_pk_bf16_f32 {v(dst)}, {v(x)}, {v(x+1)}")
        A(f"v_cvt_pk_bf16_f32 {v(dst+1)}, {v(x+2)}, {v(x+3)}")
        A(f"v_cvt_pk_bf16_f32 {v(dst+2)}, {v(y)}, {v(y+1)}")
        A(f"v_cvt_pk_bf16_f32 {v(dst+3)}, {v(y+2)}, {v(y+3)}")
    acc = lambda rt, t: ACC + (rt*4 + t)*4
    def seghead(dst, shift, base):
        A(f"s_lshl_b32 {s(dst)}, {s(sSEG)}, 5")
        A(f"s_add_u32 {s(dst)}, {s(dst)}, {H}")
        A(f"s_lshl_b32 {s(dst)}, {s(dst)}, {shift}")
        A(f"s_add_u32 {s(dst)}, {s(dst)}, {base}")
    def epi1():
        seghead(sA, 14, G.WS_KVX)
        A(f"s_lshl_b32 {s(sB)}, {W}, 10")
        A(f"s_add_u32 {s(sB)}, {s(sB)}, {s(sA)}")
        A(f"s_add_u32 {s(sC)}, {s(sB)}, 4096")
        A(f"s_lshl_b32 {s(sD)}, {W}, 11")
        A(f"s_add_u32 {s(sD)}, {s(sD)}, {s(sA)}")
        A(f"s_add_u32 {s(sD)}, {s(sD)}, 8192")
        pack8(96, acc(0,0), acc(0,1))
        A(f"buffer_store_dwordx4 v[96:99], {v(vL16)}, {s(SWS,4)}, {s(sB)} offen sc1")
        pack8(100, acc(1,0), acc(1,1))
        A(f"buffer_store_dwordx4 v[100:103], {v(vL16)}, {s(SWS,4)}, {s(sC)} offen sc1")
        pack8(104, acc(0,2), acc(1,2))
        A(f"buffer_store_dwordx4 v[104:107], {v(vL16)}, {s(SWS,4)}, {s(sD)} offen sc1")
        pack8(108, acc(0,3), acc(1,3))
        A(f"buffer_store_dwordx4 v[108:111], {v(vL16)}, {s(SWS,4)}, {s(sD)} offen offset:1024 sc1")
        seghead(sA, 12, G.WS_KVM)
        A(f"s_lshl_b32 {s(sB)}, {W}, 10")
        A(f"s_add_u32 {s(sB)}, {s(sB)}, {s(sA)}")
        A(f"buffer_store_dwordx4 v[16:19], {v(vL16)}, {s(SWS,4)}, {s(sB)} offen sc1")
    for i in range(4): A(f"v_mov_b32 {v(16+i)}, {SENT}")
    proj_pass("L_wk_p1", (2, 3), epi1, True)
    A(f"s_lshl_b32 {s(sA)}, {H}, 15")
    A(f"s_add_u32 {s(sA)}, {s(sA)}, {s(sRSB)}")
    for sl in range(2):
        for i in range(8):
            A(f"s_add_u32 {s(sB)}, {s(sA)}, {sl*0x100000 + i*4096}")
            A(f"buffer_store_dwordx4 v[16:19], v12, {s(SWS,4)}, {s(sB)} offen")

    wst(2)
    chunks = proj_chunks(SWQ, 0)
    chunks[0]['first'] = lambda A: signal(f"{s(G.sDB)} offset:{G.DBG_RS*4}", 1)
    for b in range(2):
        for hb in range(2):
            for q in range(2):
                reads = []
                for p in range(4):
                    for m in range(2):
                        dst = a(((2 + m) * 16 + 4*p + 2*b + hb) * 4 + 2*q, 2)
                        reads.append(lambda R, dst=dst, p=p, m=m: f"ds_read_b64_tr_b16 {dst}, v11 offset:{R + p*1024 + 2*m*ISTR}")
                chunks.append(dict(srd=[SWG, SWG, SWU, SWU], voff=10,
                                   soff=[(64*b + 32*hb + 4*q + 2*(u & 1)) * 2752 for u in range(4)], reads=reads))
    A(f"s_lshl_b32 {s(sT0)}, {W}, 10")
    G.run_loader(A, chunks)
    wst(3)
    A(f"s_lshl_b32 {s(sA)}, {H}, 2")
    A(f"s_add_u32 {s(sA)}, {s(sA)}, {W}")
    A(f"s_cmp_lt_u32 {s(sA)}, 86")
    A(f"s_cselect_b32 {s(sHM)}, -1, 0")
    def epi2():
        seghead(sA, 13, G.WS_QX)
        A(f"s_lshl_b32 {s(sB)}, {W}, 10")
        A(f"s_add_u32 {s(sB)}, {s(sB)}, {s(sA)}")
        A(f"s_add_u32 {s(sC)}, {s(sB)}, 4096")
        pack8(96, acc(0,0), acc(0,1))
        A(f"buffer_store_dwordx4 v[96:99], {v(vL16)}, {s(SWS,4)}, {s(sB)} offen")
        pack8(100, acc(1,0), acc(1,1))
        A(f"buffer_store_dwordx4 v[100:103], {v(vL16)}, {s(SWS,4)}, {s(sC)} offen")
        seghead(sA, 12, G.WS_HX)
        A(f"s_lshr_b32 {s(sB)}, {W}, 1")
        A(f"s_lshl_b32 {s(sB)}, {s(sB)}, 10")
        A(f"s_and_b32 {s(sC)}, {W}, 1")
        A(f"s_lshl_b32 {s(sC)}, {s(sC)}, 3")
        A(f"s_add_u32 {s(sB)}, {s(sB)}, {s(sC)}")
        A(f"s_add_u32 {s(sB)}, {s(sB)}, {s(sA)}")
        A(f"s_mov_b32 {s(sD)}, 0xffff0000")
        A(f"s_mov_b32 {s(sE)}, 0x3d372713")
        A(f"s_mov_b32 {s(sF)}, 0xc0135761")
        def rnd2(x):
            A(f"v_cvt_pk_bf16_f32 v112, {v(x)}, {v(x+1)}")
            A(f"v_lshlrev_b32 {v(x)}, 16, v112")
            A(f"v_and_b32 {v(x+1)}, {s(sD)}, v112")
        for rt in range(2):
            gt, up = acc(rt, 2), acc(rt, 3)
            for h2 in (0, 2): rnd2(gt + h2); rnd2(up + h2)
            for r in range(4):
                A(f"v_mul_f32 {v(113+r)}, {v(gt+r)}, {v(gt+r)}")
                A(f"v_fma_f32 {v(113+r)}, {v(113+r)}, {s(sE)}, 1.0")
                A(f"v_mul_f32 {v(113+r)}, {v(113+r)}, {v(gt+r)}")
                A(f"v_mul_f32 {v(113+r)}, {s(sF)}, {v(113+r)}")
                A(f"v_exp_f32 {v(113+r)}, {v(113+r)}")
            for r in range(4):
                A(f"v_add_f32 {v(113+r)}, 1.0, {v(113+r)}")
                A(f"v_rcp_f32 {v(113+r)}, {v(113+r)}")
            for r in range(4): A(f"v_mul_f32 {v(gt+r)}, {v(gt+r)}, {v(113+r)}")
            for h2 in (0, 2): rnd2(gt + h2)
            for r in range(4): A(f"v_mul_f32 {v(gt+r)}, {v(gt+r)}, {v(up+r)}")
            d = 104 + 2*rt
            A(f"v_cvt_pk_bf16_f32 {v(d)}, {v(gt)}, {v(gt+1)}")
            A(f"v_cvt_pk_bf16_f32 {v(d+1)}, {v(gt+2)}, {v(gt+3)}")
            A(f"v_and_b32 {v(d)}, {s(sHM)}, {v(d)}")
            A(f"v_and_b32 {v(d+1)}, {s(sHM)}, {v(d+1)}")
            A(f"buffer_store_dwordx2 {v(d,2)}, {v(vL16)}, {s(SWS,4)}, {s(sB)} offen offset:{rt*2048}")
    proj_pass("L_wk_p2", (), epi2, False)

    wst(4)
    chunks = []
    A(f"s_lshl_b32 {s(sE)}, {H}, 17")
    A(f"s_lshl_b32 {s(sF)}, {H}, 16")
    for ks in range(6):
        for q in range(2):
            reads = [lambda R, ct=ct, ks=ks, q=q: f"ds_read_b64_tr_b16 {a((ks*8+ct)*4 + 2*q, 2)}, v9 offset:{R + ct*32}" for ct in range(8)]
            k2 = ks if ks < 4 else ks - 4
            chunks.append(dict(srd=SWO if ks < 4 else SWD, voff=8, sbase=sE if ks < 4 else sF,
                               soff=[(32*k2 + 16*q + rr) * 1024 for rr in range(4)], reads=reads))
    A(f"s_lshl_b32 {s(sT0)}, {W}, 10")
    G.run_loader(A, chunks)

    wst(5)
    KX, QF, VX, HF, KM, VMR, VMO = 16, 48, 64, 80, 96, 112, 116
    T0, T1, T2, PM, ONE, OT, LL, MASK, SEL, M, M2, M3 = 132, 136, 140, 144, 148, 152, 168, 172, 180, 184, 185, 186
    XR, RES, OAC, OF, GG = 188, 168, 192, 16, 48
    wait_ctr("L_wk_rw", s(G.sDB), G.DBG_RS)
    A(f"s_and_b32 {s(sA)}, {W}, 1")
    A(f"s_lshl_b32 {s(sA)}, {s(sA)}, 4")
    A(f"v_add_u32 v14, {s(sA)}, {v(vR16)}")
    A(f"v_lshlrev_b32 v15, 2, {v(vG)}")
    A("v_mov_b32 v13, 0xf149f2ca")
    for i in range(8):
        A(f"v_add_u32 {v(M)}, {16*(i>>2) + (i&3)}, v15")
        A(f"v_cmp_gt_u32 vcc, {v(M)}, v14")
        A(f"v_cndmask_b32 {v(MASK+i)}, 0, v13, vcc")
    for i in range(4): A(f"v_mov_b32 {v(ONE+i)}, 0x3f803f80")
    for i in range(1, 4): A(f"v_mov_b32 {v(PM+i)}, 0")
    for e in range(4):
        for i in range(1, 4): A(f"v_mov_b32 {v(VMO+4*e+i)}, 0")
    A("v_and_b32 v13, 1, v0")
    A("v_cmp_eq_u32 vcc, 0, v13")
    A("v_mov_b32 v14, 0x3f80")
    A("v_mov_b32 v15, 0x3f800000")
    A("v_cndmask_b32 v14, v15, v14, vcc")
    A(f"v_lshrrev_b32 v13, 1, {v(vR16)}")
    for r in range(4):
        A(f"v_cmp_eq_u32 vcc, {r}, v13")
        A(f"v_cndmask_b32 {v(SEL+r)}, 0, v14, vcc")
    A("v_and_b32 v13, 3, v0")
    A("v_bfe_u32 v14, v0, 2, 1")
    A("v_lshl_add_u32 v13, v14, 4, v13")
    A("v_lshlrev_b32 v13, 10, v13")
    A(f"v_lshl_add_u32 v13, {v(vG)}, 3, v13")
    A(f"s_lshl_b32 {s(sA)}, {W}, 12")
    A(f"s_lshl_b32 {s(sB)}, {H}, 5")
    A(f"s_add_u32 {s(sA)}, {s(sA)}, {s(sB)}")
    A(f"v_add_u32 v13, {s(sA)}, v13")
    A(f"v_cmp_gt_u32 vcc, 8, {v(vR16)}")
    A("v_mov_b32 v14, 0x7ffffff0")
    A("v_cndmask_b32 v6, v14, v13, vcc")
    A(f"s_and_b32 {s(sA)}, {W}, 1")
    A(f"s_lshl_b32 {s(sA)}, {s(sA)}, 12")
    A(f"s_lshr_b32 {s(sB)}, {W}, 1")
    A(f"s_lshl_b32 {s(sB)}, {s(sB)}, 11")
    A(f"s_add_u32 {s(sA)}, {s(sA)}, {s(sB)}")
    A(f"v_add_u32 v7, {s(sA)}, {v(vL16)}")
    A(f"s_lshl_b32 {s(sA)}, {W}, 13")
    A(f"s_add_u32 {s(sA)}, {s(sA)}, 16384")
    A(f"v_mul_u32_u24 v13, 1088, {v(vG)}")
    A(f"v_lshl_add_u32 v13, {v(vR16)}, 3, v13")
    A(f"v_add_u32 v8, {s(sA)}, v13")
    A("v_and_b32 v13, 3, v0")
    A("v_mul_u32_u24 v13, 1088, v13")
    A("v_lshrrev_b32 v14, 2, v0")
    A("v_lshl_add_u32 v13, v14, 3, v13")
    A(f"v_add_u32 v9, {s(sA)}, v13")
    for ct in range(8):
        A(f"s_xor_b32 {s(sA)}, {H}, {ct}")
        A(f"s_lshl_b32 {s(sA)}, {s(sA)}, 10")
        A(f"s_lshl_b32 {s(sB)}, {W}, 18")
        A(f"s_add_u32 {s(sA)}, {s(sA)}, {s(sB)}")
        A(f"s_add_u32 {s(sRO+ct)}, {s(sA)}, {ct*32768}")
    A(f"s_mov_b32 {s(sCS)}, 0x3e0293ee")
    A(f"s_mov_b32 {s(sCS+1)}, 0x3e0293ee")
    def attn():
        ld = lambda d, so, off: A(f"buffer_load_dwordx4 {v(d,4)}, {v(vL16)}, {s(SWS,4)}, {s(so)} offen offset:{off} sc1")
        seghead(sA, 12, G.WS_HX)
        for i in range(4): ld(HF + 4*i, sA, i*1024)
        seghead(sA, 13, G.WS_QX)
        A(f"s_and_b32 {s(sB)}, {W}, 1")
        A(f"s_lshl_b32 {s(sB)}, {s(sB)}, 12")
        A(f"s_add_u32 {s(sA)}, {s(sA)}, {s(sB)}")
        for i in range(4): ld(QF + 4*i, sA, i*1024)
        seghead(sA, 14, G.WS_KVX)
        for i in range(4): ld(KX + 4*i, sA, i*1024)
        A(f"s_add_u32 {s(sB)}, {s(sA)}, 4096")
        for i in range(4): ld(KX + 16 + 4*i, sB, i*1024)
        A(f"s_lshr_b32 {s(sB)}, {W}, 1")
        A(f"s_lshl_b32 {s(sB)}, {s(sB)}, 12")
        A(f"s_add_u32 {s(sB)}, {s(sB)}, {s(sA)}")
        A(f"s_add_u32 {s(sB)}, {s(sB)}, 8192")
        for i in range(4): ld(VX + 4*i, sB, i*1024)
        A(f"s_lshl_b32 {s(sD)}, {s(sSEG)}, 15")
        A(f"buffer_load_dwordx2 {v(XR,2)}, v6, {s(SX,4)}, {s(sD)} offen")
        oac = lambda rt, ct: v(OAC + (ct*2 + rt)*4, 4)
        A("s_waitcnt vmcnt(17)")
        for k2 in range(2):
            for ct in range(8):
                for rt in range(2):
                    mf(oac(rt, ct), v(HF + (rt*2 + k2)*4, 4), a(((4 + k2)*8 + ct)*4, 4), "0" if k2 == 0 else oac(rt, ct))
        A("s_waitcnt vmcnt(5)")
        for ks in range(4):
            mf(v(T0,4), v(KX + 4*ks, 4), v(QF + 4*ks, 4), v(MASK,4) if ks == 0 else v(T0,4))
        for ks in range(4):
            mf(v(T1,4), v(KX + 16 + 4*ks, 4), v(QF + 4*ks, 4), v(MASK+4,4) if ks == 0 else v(T1,4))
        seghead(sA, 12, G.WS_KVM)
        A.label("L_wk_km")
        for i in range(4): ld(KM + 4*i, sA, i*1024)
        A("s_waitcnt vmcnt(0)")
        A(f"v_max_u32 {v(M)}, {v(KM)}, {v(KM+1)}")
        for i in range(2, 16, 2): A(f"v_max3_u32 {v(M)}, {v(M)}, {v(KM+i)}, {v(KM+i+1)}")
        A(f"v_cmp_eq_u32 vcc, {SENT}, {v(M)}")
        A("s_cbranch_vccz L_wk_kmok")
        A("s_sleep 4")
        G.poll_budget(A, "L_wk_km", "L_wk_kmok")
        A.label("L_wk_kmok")
        wst_seg(2)
        for i in range(4):
            for t2 in range(2):
                A(f"ds_write_b32 v8, {v(KM+4*i+t2)} offset:{(32*i+16*t2)*8}")
        A(f"s_cmp_ge_u32 {W}, 2")
        A("s_cselect_b64 vcc, -1, 0")
        for e in range(4):
            A(f"v_cndmask_b32 {v(VMO+4*e)}, {v(KM+4*(e>>1)+2+(e&1))}, {v(KM+8+4*(e>>1)+2+(e&1))}, vcc")
        A(lg(0))
        for ks in range(4):
            for q in range(2):
                A(f"ds_read_b64_tr_b16 {v(KM+4*ks+2*q,2)}, v9 offset:{(32*ks+16*q)*8}")
        for ks in range(4):
            A(lg(6 - 2*ks))
            mf(v(T2,4), v(KM + 4*ks, 4), v(QF + 4*ks, 4), "0" if ks == 0 else v(T2,4))
        A(f"v_max3_f32 {v(M)}, {v(T0)}, {v(T0+1)}, {v(T0+2)}")
        A(f"v_max3_f32 {v(M)}, {v(M)}, {v(T0+3)}, {v(T1)}")
        A(f"v_max3_f32 {v(M)}, {v(M)}, {v(T1+1)}, {v(T1+2)}")
        A(f"v_max_f32 {v(M)}, {v(M)}, {v(T1+3)}")
        A(f"v_max3_f32 {v(M2)}, {v(M)}, {v(T2)}, {v(T2+1)}")
        A(f"v_max3_f32 {v(M)}, {v(M)}, {v(T2)}, {v(T2+1)}")
        A(f"v_permlane32_swap_b32 {v(M)}, {v(M2)}")
        A(f"v_max_f32 {v(M3)}, {v(M)}, {v(M2)}")
        A(f"v_max_f32 {v(M)}, {v(M)}, {v(M2)}")
        A(f"v_permlane16_swap_b32 {v(M)}, {v(M3)}")
        A(f"v_max_f32 {v(M)}, {v(M)}, {v(M3)}")
        A(f"v_mul_f32 {v(M)}, {s(sCS)}, {v(M)}")
        for r in range(T0, T0 + 10, 2):
            A(f"v_pk_fma_f32 {v(r,2)}, {v(r,2)}, {s(sCS,2)}, {v(M,2)} op_sel_hi:[1,1,0] neg_lo:[0,0,1] neg_hi:[0,0,1]")
        for r in range(T0, T0 + 10): A(f"v_exp_f32 {v(r)}, {v(r)}")
        for i in range(4): A(f"v_cvt_pk_bf16_f32 {v(T0+i)}, {v(T0+2*i)}, {v(T0+2*i+1)}")
        A(f"v_cvt_pk_bf16_f32 {v(PM)}, {v(T2)}, {v(T2+1)}")
        mf(v(LL,4), v(ONE,4), v(T0,4), "0")
        mf(v(LL,4), v(ONE,4), v(PM,4), v(LL,4))
        for e in range(4):
            mf(v(OT+4*e,4), v(VX+4*e,4), v(T0,4), "0")
            mf(v(OT+4*e,4), v(VMO+4*e,4), v(PM,4), v(OT+4*e,4))
        A(f"v_rcp_f32 {v(M)}, {v(LL)}")
        for r in range(OT, OT + 16): A(f"v_mul_f32 {v(r)}, {v(r)}, {v(M)}")
        pack8(OT, OT, OT + 4)
        pack8(OT + 4, OT + 8, OT + 12)
        A(f"ds_write_b128 v7, {v(OT,4)} offset:{L_OI}")
        A(f"ds_write_b128 v7, {v(OT+4,4)} offset:{L_OI+1024}")
        A(lg(0))
        A("s_barrier")
        for i in range(8): A(f"ds_read_b128 {v(OF+4*i,4)}, {v(vL16)} offset:{L_OI + i*1024}")
        A(f"v_add_u32 v13, {s(sRSB)}, {v(vL16)}")
        A(lg(0))
        A("s_barrier")
        def fin(ct):
            x = OAC + ct*8
            pack8(x, x, x + 4)
            A(f"buffer_store_dwordx4 {v(x,4)}, v13, {s(SWS,4)}, {s(sRO+ct)} offen")
        for ct in range(8):
            for ks in range(4):
                for rt in range(2):
                    mf(oac(rt, ct), v(OF + (rt*4 + ks)*4, 4), a((ks*8 + ct)*4, 4), oac(rt, ct))
            if ct: fin(ct - 1)
        fin(7)
        A(f"s_lshl_b32 {s(sA)}, {H}, 15")
        A(f"s_add_u32 {s(sA)}, {s(sA)}, {s(sRSB)}")
        A.label("L_wk_rs")
        for i in range(8):
            A(f"s_add_u32 {s(sB)}, {s(sA)}, {i*4096}")
            A(f"buffer_load_dwordx4 {v(GG+4*i,4)}, v12, {s(SWS,4)}, {s(sB)} offen sc1")
        A("s_waitcnt vmcnt(0)")
        for i in range(8):
            mf(v(RES,4), v(GG+4*i,4), v(SEL,4), "0" if i == 0 else v(RES,4))
            if i == 0: A(f"v_max_u32 {v(M)}, {v(GG)}, {v(GG+1)}")
            else: A(f"v_max3_u32 {v(M)}, {v(M)}, {v(GG+4*i)}, {v(GG+4*i+1)}")
            A(f"v_max3_u32 {v(M)}, {v(M)}, {v(GG+4*i+2)}, {v(GG+4*i+3)}")
        A(f"v_cmp_eq_u32 vcc, {SENT}, {v(M)}")
        A("s_cbranch_vccz L_wk_rsok")
        A("s_sleep 1")
        G.poll_budget(A, "L_wk_rs", "L_wk_rsok")
        A.label("L_wk_rsok")
        A(f"s_mov_b32 {s(sC)}, 0xffff0000")
        A(f"v_lshlrev_b32 {v(M)}, 16, {v(XR)}")
        A(f"v_and_b32 {v(M2)}, {s(sC)}, {v(XR)}")
        A(f"v_lshlrev_b32 {v(M3)}, 16, {v(XR+1)}")
        A(f"v_and_b32 {v(XR+1)}, {s(sC)}, {v(XR+1)}")
        A("s_nop 3")
        A(f"v_add_f32 {v(RES)}, {v(RES)}, {v(M)}")
        A(f"v_add_f32 {v(RES+1)}, {v(RES+1)}, {v(M2)}")
        A(f"v_add_f32 {v(RES+2)}, {v(RES+2)}, {v(M3)}")
        A(f"v_add_f32 {v(RES+3)}, {v(RES+3)}, {v(XR+1)}")
        A(f"v_cvt_pk_bf16_f32 {v(RES)}, {v(RES)}, {v(RES+1)}")
        A(f"v_cvt_pk_bf16_f32 {v(RES+1)}, {v(RES+2)}, {v(RES+3)}")
        A(f"buffer_store_dwordx2 {v(RES,2)}, v6, {s(SOUT,4)}, {s(sD)} offen")
        wst_seg(3)
        for i in range(4): A(f"v_mov_b32 {v(GG+i)}, {SENT}")
        for i in range(8):
            A(f"s_add_u32 {s(sB)}, {s(sA)}, {i*4096}")
            A(f"buffer_store_dwordx4 {v(GG,4)}, v12, {s(SWS,4)}, {s(sB)} offen")
        A(f"s_xor_b32 {s(sRSB)}, {s(sRSB)}, 0x100000")
    seg_loop("L_wk_at", attn)
    A("s_waitcnt vmcnt(0)")
    A("s_endpgm")
```

```python
import sys
from asmlib import *

NAME = "parallel_sum__memory_aug_recurrent_mem_tr__geglu_ffn__prompt"
KN = NAME + "_kernel"

WS_XN   = 0x0000000
WS_KVX  = 0x1000000
WS_QX   = 0x3000000
WS_HX   = 0x4000000
WS_KVM  = 0x5000000
WS_HOP1 = 0x6000000
WS_HOP2 = 0x6200000
WS_FLG  = 0x6300000
WS_PROF = 0x6400000
WS_RS   = 0x7000000
WS_SIZE = 0x10000000

DBG_RANK, DBG_INIT, DBG_RS = 0, 2, 4

SX, SWS, SDBG, SWQ, SWK, SWV, SWO, SWG, SWU, SWD, SOUT, SM0 = 4, 8, 12, 16, 20, 24, 28, 32, 36, 40, 44, 48
sWAVE, sXCC, sRANK, sBUD = 52, 53, 54, 55
sT0, sT1, sT2, sT3 = 56, 57, 58, 59
sDB = 3
sSTEP, sCLS, sH1L, sKXL, sH1S0, sKVX, sKVM, sH2N, sKM = 60, 61, 62, 63, 64, 68, 69, 70, 71
sCSC, sVM, sONE, sTCH, sXO = 72, 75, 100, 3, 76
sVX, sTC2, sFL, sH1R = 77, 78, 79, 69
sBD2, sSELM, sM0P, sARM, sFS, sH2, sH2P, sX2 = 74, 92, 66, 67, 5, 6, 40, 42
sRDY = 0
ABSSTEP = 40
FINE, FSTEP, RSM = 0, 4, 0
NEARLY, THRN, PRETEAM, PRE, WB, KSLP = 2, 10, 4, 3, 1, 4
S1, S2, K1, PAT1, PAT2 = 0x000, 0x000, 8, '010010', '01000100'
P1REP, P2REP, P1PRE, P2PRE, P1PAD = 3, 3, 6, 5, 0
sPROF = 80

SENT = -1
OPT = set(sys.argv[2:])
for o_ in list(OPT):
    if '=' in o_:
        k_, v_ = o_.split('=')
        globals()[k_] = v_ if k_.startswith('PAT') else int(v_, 0)


def srd(A, base, argoff, nbytes):
    A(f"s_load_dwordx2 {s(base,2)}, s[0:1], {argoff}")
def srd2(A, base, nbytes):
    A(f"s_mov_b32 {s(base+2)}, {nbytes:#x}")
    A(f"s_mov_b32 {s(base+3)}, 0x00020000")

def prologue(A):
    if 'prof' in OPT or 'tl' in OPT: A("s_memrealtime s[96:97]")
    A("s_cmp_ge_u32 s2, 256")
    A("s_cbranch_scc1 L_end")
    bufs = [(SX, 0, 2097152), (SM0, 8, 8192), (SWQ, 16, 4194304), (SWK, 24, 4194304), (SWV, 32, 4194304),
            (SWO, 40, 4194304), (SWG, 64, 1409024), (SWU, 72, 1409024), (SWD, 80, 1409024),
            (SOUT, 88, 2097152), (SDBG, 96, 256), (SWS, 104, WS_SIZE)]
    for b, off, n in bufs: srd(A, b, off, n)
    A(f"s_getreg_b32 {s(sXCC)}, hwreg(HW_REG_XCC_ID)")
    A(f"s_and_b32 {s(sXCC)}, {s(sXCC)}, 7")
    A("v_lshrrev_b32 v1, 6, v0")
    A(f"v_readfirstlane_b32 {s(sWAVE)}, v1")
    A("v_and_b32 v0, 63, v0")
    A(f"s_mov_b32 {s(sBUD)}, 0x400000")
    A(f"s_and_b32 {s(sDB)}, {s(sXCC)}, 3")
    A(f"s_lshl_b32 {s(sDB)}, {s(sDB)}, 6")
    A(f"s_and_b32 {s(sT0)}, {s(sXCC)}, 4")
    A(f"s_add_u32 {s(sDB)}, {s(sDB)}, {s(sT0)}")
    A("s_waitcnt lgkmcnt(0)")
    for b, off, n in bufs: srd2(A, b, n)
    A(f"s_cmp_lg_u32 {s(sWAVE)}, 0")
    A("s_cbranch_scc1 L_rank_sent")
    A(f"v_mov_b32 v2, {s(sDB)}")
    A("v_mov_b32 v3, 1")
    A("s_mov_b64 exec, 1")
    A(f"buffer_atomic_add v3, v2, {s(SDBG,4)}, 0 offen offset:{DBG_RANK*4} sc0 sc1")
    A("s_mov_b64 exec, -1")
    A.label("L_rank_sent")
    A("v_lshlrev_b32 v4, 4, v0")
    A("s_lshl_b32 s60, s2, 2")
    A(f"s_add_u32 s60, s60, {s(sWAVE)}")
    A("s_lshl_b32 s60, s60, 12")
    if PRE != 1: A("s_waitcnt vmcnt(0)")
    for k, sr in enumerate((SWK, SWV, SWQ, SWO) if PRE == 1 else ()):
        if k == PRETEAM:
            A(f"s_cmp_eq_u32 {s(sXCC)}, 0")
            A("s_cbranch_scc1 L_pre_done")
        for i in range(4): A(f"buffer_load_dwordx4 v[252:255], v4, {s(sr,4)}, s60 offen offset:{i*1024}")
    A("s_waitcnt vmcnt(16)")
    A("s_branch L_pre_join")
    A.label("L_pre_done")
    A(f"s_waitcnt vmcnt({4*PRETEAM})")
    A.label("L_pre_join")
    A(f"s_cmp_lg_u32 {s(sWAVE)}, 0")
    A("s_cbranch_scc1 L_rank_wait")
    A("v_mov_b32 v2, 0")
    A("s_mov_b64 exec, 1")
    A("ds_write_b32 v2, v3")
    A("s_mov_b64 exec, -1")
    A("s_waitcnt lgkmcnt(0)")
    A.label("L_rank_wait")
    A("s_barrier")
    A("v_mov_b32 v2, 0")
    A("ds_read_b32 v3, v2")
    A("s_waitcnt lgkmcnt(0)")
    A(f"v_readfirstlane_b32 {s(sRANK)}, v3")
    A("s_barrier")
    A(f"s_cmp_ge_u32 {s(sRANK)}, 32")
    A("s_cbranch_scc1 L_end")

def poll_budget(A, lretry, lok):
    A(f"s_cmp_eq_u32 {s(sBUD)}, 0")
    A(f"s_cbranch_scc1 {lok}")
    A(f"s_sub_u32 {s(sBUD)}, {s(sBUD)}, 1")
    A(f"s_branch {lretry}")

RING = 5
ISTR = RING * 4096 + 32

def run_loader(A, chunks, after_prime=None, throttle=None, tlreg=None):
    n = len(chunks)
    def issue(i):
        c = chunks[i]
        slot = i % RING
        if throttle is not None and i < THRN:
            l = A.newlabel("thr")
            A(f"s_cmp_eq_u32 {s(throttle)}, 0")
            A(f"s_cbranch_scc1 {l}")
            A("s_waitcnt vmcnt(0)")
            A.label(l)
        for rr in range(4):
            A(f"s_add_u32 m0, {s(sT0)}, {rr*ISTR + slot*4096}")
            if c.get('sbase') is not None:
                A(f"s_add_u32 {s(sT1)}, {s(c['sbase'])}, {c['soff'][rr]}")
            else:
                A(f"s_mov_b32 {s(sT1)}, {c['soff'][rr]}")
            A(f"buffer_load_dwordx4 {v(c['voff'])}, {s(c['srd'][rr] if isinstance(c['srd'], list) else c['srd'],4)}, {s(sT1)} offen lds")
    for i in range(min(RING - 1, n)): issue(i)
    if after_prime: after_prime(A)
    for i in range(n):
        infl = min(RING - 2, n - 1 - i)
        A(f"s_waitcnt vmcnt({infl*4}) lgkmcnt(0)")
        A("s_barrier")
        if tlreg is not None and i % 4 == 0:
            A("s_memrealtime s[98:99]")
            A("s_waitcnt lgkmcnt(0)")
            A(f"s_mov_b32 {s(tlreg + i // 4)}, s98")
        if i + RING - 1 < n: issue(i + RING - 1)
        if chunks[i].get('first'): chunks[i]['first'](A)
        for t in chunks[i]['reads']: A(t(( i % RING) * 4096))
        if chunks[i].get('post'):
            A("s_waitcnt lgkmcnt(0)")
            for t in chunks[i]['post']: A(t)
    A("s_waitcnt lgkmcnt(0)")
    A("s_barrier")

L_MEM, L_QK, L_O, L_KX, L_WB, L_WA = 0, 8192, 24576, 16384, 32768, 98304
QKS = 1088
vLANE, vIDX, vL16, vMW, vMR1, vMR2, vMR3, vQKW, vXR, vP, vWA, vWB, vH1S, vFLAG, vH2S, vSEL = range(16)
RA, RK, RQ, RV, RKX, RS_, RVX, RT = 16, 48, 56, 64, 72, 104, 120, 116
RX = 48

OSEQ = [(a_, 0) for a_ in range(4)] + [(a_, i_) for a_ in range(4) for i_ in (1, 2, 3)]

def team_opnd(mat, t, j):
    if mat == 'Q': return ('a', (t * 8 + j) * 8)
    if mat == 'V': return ('a', 128 + (t * 8 + j) * 8)
    if mat == 'K': return None if j < 6 else ('v', 128 + ((j - 6) * 2 + t) * 8)
    if mat == 'O':
        n = OSEQ.index((t, j))
        return None if n < 4 else ('v', 160 + (n - 4) * 8)
def rtxt(loc, off, n): return (a if loc[0] == 'a' else v)(loc[1] + off, n)

def team(A, prof=False, nsteps=64):
    W, H = s(sWAVE), s(sRANK)
    A.label("L_team")
    if prof or 'tl' in OPT: A("s_mov_b32 s4, s96")
    if 'tl' in OPT:
        A("s_memrealtime s[94:95]")
    A("v_and_b32 v16, 15, v0")
    A("v_lshrrev_b32 v17, 4, v0")
    A(f"v_lshlrev_b32 {v(vL16)}, 4, v0")
    A("v_lshrrev_b32 v18, 3, v0")
    A("v_lshlrev_b32 v18, 7, v18")
    A(f"v_add_u32 {v(vP)}, v18, {v(vL16)}")
    A(f"s_lshr_b32 {s(sT1)}, {W}, 1")
    A(f"s_lshl_b32 {s(sT1)}, {s(sT1)}, 12")
    A(f"s_and_b32 {s(sCLS)}, {W}, 1")
    A(f"s_lshl_b32 {s(sCLS)}, {s(sCLS)}, 7")
    A(f"s_add_u32 {s(sCLS)}, {s(sCLS)}, {s(sT1)}")
    A(f"s_lshl_b32 {s(sT0)}, {H}, 13")
    A(f"s_add_u32 {s(sT0)}, {s(sT0)}, {s(sCLS)}")
    A(f"s_add_u32 {s(sH1L)}, {s(sT0)}, {WS_HOP1}")
    for i in range(4): A(f"v_mov_b32 {v(124+i)}, {SENT}")
    A(f"s_lshl_b32 {s(sFL)}, {H}, 8")
    A(f"s_add_u32 {s(sFL)}, {s(sFL)}, {WS_FLG}")
    A("v_lshlrev_b32 v18, 2, v0")
    if 'team' not in OPT: A(f"buffer_store_dword v124, v18, {s(SWS,4)}, {s(sFL)} offen sc1")
    A(f"s_add_u32 {s(sT1)}, {s(sH1L)}, 0x40000")
    for i in range(2):
        A(f"buffer_store_dwordx4 {v(124,4)}, {v(vP)}, {s(SWS,4)}, {s(sH1L)} offen offset:{i*2048}")
        A(f"buffer_store_dwordx4 {v(124,4)}, {v(vP)}, {s(SWS,4)}, {s(sT1)} offen offset:{i*2048}")
    A("v_and_b32 v18, 1, v17")
    A("v_lshrrev_b32 v19, 1, v17")
    A("v_and_b32 v20, 1, v0")
    A("v_lshl_add_u32 v21, v20, 1, v18")
    A("v_lshlrev_b32 v21, 4, v21")
    A("v_and_b32 v20, 2, v0")
    A("v_add_u32 v20, v20, v19")
    A("v_lshl_add_u32 v21, v20, 2, v21")
    A(f"s_and_b32 {s(sT0)}, {H}, 24")
    A(f"s_lshl_b32 {s(sT1)}, {W}, 1")
    A(f"s_add_u32 {s(sT0)}, {s(sT0)}, {s(sT1)}")
    A(f"s_bfe_u32 {s(sT1)}, {H}, 0x10002")
    A(f"s_add_u32 {s(sT0)}, {s(sT0)}, {s(sT1)}")
    A(f"s_and_b32 {s(sT1)}, {H}, 3")
    A(f"s_lshr_b32 {s(sT2)}, {H}, 1")
    A(f"s_lshl_b32 {s(sT2)}, {s(sT2)}, 8")
    A(f"s_and_b32 {s(sT3)}, {H}, 1")
    A(f"s_lshl_b32 {s(sT3)}, {s(sT3)}, 6")
    A(f"s_add_u32 {s(sT2)}, {s(sT2)}, {s(sT3)}")
    A(f"s_add_u32 {s(sT2)}, {s(sT2)}, {s(sCLS)}")
    A(f"s_add_u32 {s(sT2)}, {s(sT2)}, {WS_HOP2}")
    A(f"v_add_u32 {v(vH2S)}, {s(sT2)}, v21")
    A("v_cmp_gt_u32 vcc, 4, v16")
    A("v_mov_b32 v23, 0x7ffffff0")
    A(f"v_cndmask_b32 {v(vH2S)}, v23, {v(vH2S)}, vcc")
    A(f"s_lshl_b32 {s(sT0)}, {s(sT0)}, 5")
    A(f"s_lshl_b32 {s(sT1)}, {s(sT1)}, 11")
    A(f"s_add_u32 {s(sT0)}, {s(sT0)}, {s(sT1)}")
    A("v_and_b32 v22, 3, v0")
    A("v_lshl_add_u32 v22, v22, 1, v19")
    A("v_lshlrev_b32 v22, 1, v22")
    A("v_lshl_add_u32 v22, v18, 10, v22")
    A(f"buffer_load_ushort v24, v22, {s(SM0,4)}, {s(sT0)} offen")
    A(f"buffer_load_ushort v25, v22, {s(SM0,4)}, {s(sT0)} offen offset:16")
    A(f"s_movk_i32 {s(sT1)}, 0x2000")
    A(f"buffer_store_dword v124, {v(vH2S)}, {s(SWS,4)}, {s(sT1)} offen")
    A("s_waitcnt vmcnt(1)")
    A("v_lshl_or_b32 v26, v25, 16, v24")
    A(f"buffer_store_dword v26, {v(vH2S)}, {s(SWS,4)}, 0 offen")
    A("v_lshlrev_b32 v25, 3, v18")
    A("v_xor_b32 v25, v25, v16")
    A("v_lshlrev_b32 v25, 4, v25")
    A("v_lshl_add_u32 v25, v19, 17, v25")
    A("v_lshl_add_u32 v25, v18, 15, v25")
    A(f"s_lshl_b32 {s(sT0)}, {W}, 18")
    A(f"s_lshl_b32 {s(sT1)}, {H}, 8")
    A(f"s_add_u32 {s(sT0)}, {s(sT0)}, {s(sT1)}")
    A(f"v_add_u32 v100, {s(sT0)}, v25")
    A("v_lshlrev_b32 v25, 14, v18")
    A("v_lshl_add_u32 v25, v19, 12, v25")
    A("v_lshl_add_u32 v25, v16, 4, v25")
    A(f"s_lshl_b32 {s(sT0)}, {H}, 17")
    A(f"s_lshl_b32 {s(sT1)}, {W}, 8")
    A(f"s_add_u32 {s(sT0)}, {s(sT0)}, {s(sT1)}")
    A(f"v_add_u32 v101, {s(sT0)}, v25")
    A("v_bfe_u32 v25, v0, 2, 2")
    A(f"v_mul_u32_u24 v25, {ISTR}, v25")
    A("v_lshl_add_u32 v25, v17, 8, v25")
    A("v_and_b32 v26, 3, v0")
    A("v_lshlrev_b32 v27, 7, v18")
    A(f"s_lshl_b32 {s(sT0)}, {W}, 6")
    A(f"v_xor_b32 v27, {s(sT0)}, v27")
    A("v_lshl_add_u32 v27, v26, 3, v27")
    A("v_add_u32 v27, v27, v25")
    for jp in range(4):
        A(f"s_xor_b32 {s(sT0)}, {W}, {jp}")
        A(f"s_lshl_b32 {s(sT0)}, {s(sT0)}, 10")
        A(f"v_add_u32 {v(102+jp)}, {s(sT0)}, v27")
    A("v_lshrrev_b32 v27, 1, v26")
    A("v_lshlrev_b32 v27, 5, v27")
    A("v_and_b32 v28, 1, v0")
    A("v_lshl_add_u32 v27, v28, 3, v27")
    A("v_lshl_add_u32 v27, v17, 8, v27")
    A("v_bfe_u32 v28, v0, 3, 1")
    A("v_lshl_add_u32 v27, v28, 4, v27")
    A("v_bfe_u32 v28, v0, 2, 1")
    A(f"v_mul_u32_u24 v28, {ISTR}, v28")
    A("v_add_u32 v27, v27, v28")
    for i in range(4):
        A(f"s_xor_b32 {s(80+i)}, {W}, {i}")
        A(f"s_lshl_b32 {s(80+i)}, {s(80+i)}, 15")
    A(f"s_lshl_b32 {s(sT0)}, {W}, 10")
    A(f"v_add_u32 v106, {s(sT0)}, v27")
    A(f"s_lshl_b32 {s(sT1)}, {W}, 11")
    A(f"s_add_u32 {s(sT2)}, {s(sT1)}, {L_WA}")
    A(f"v_add_u32 {v(vWA)}, {s(sT2)}, {v(vL16)}")
    A(f"s_add_u32 {s(sT2)}, {s(sT1)}, {L_WB}")
    A(f"v_add_u32 {v(vWB)}, {s(sT2)}, {v(vL16)}")
    A(f"v_add_u32 {v(vMW)}, {s(sT1)}, {v(vL16)}")
    for p, r in ((1, vMR1), (2, vMR2), (3, vMR3)):
        A(f"s_xor_b32 {s(sT2)}, {W}, {p}")
        A(f"s_lshl_b32 {s(sT2)}, {s(sT2)}, 11")
        A(f"v_add_u32 {v(r)}, {s(sT2)}, {v(vL16)}")
    A("v_and_b32 v28, 2, v0")
    A("v_cmp_eq_u32 vcc, 0, v28")
    A("v_mov_b32 v29, 0xeeee")
    A("v_mov_b32 v30, 0x4444")
    A(f"v_cndmask_b32 {v(vIDX)}, v29, v30, vcc")
    A(f"v_mul_u32_u24 v28, {QKS}, v17")
    A("v_lshl_add_u32 v28, v16, 3, v28")
    A(f"s_lshl_b32 {s(sT2)}, {W}, 8")
    A(f"s_add_u32 {s(sT2)}, {s(sT2)}, {L_QK}")
    A(f"v_add_u32 {v(vQKW)}, {s(sT2)}, v28")
    A(f"v_mul_u32_u24 v28, {QKS}, v26")
    A("v_lshrrev_b32 v29, 2, v0")
    A("v_lshl_add_u32 v28, v29, 3, v28")
    A(f"v_add_u32 {v(vXR)}, {L_QK}, v28")
    A("v_lshrrev_b32 v30, 3, v16")
    A("v_lshl_add_u32 v30, v30, 2, v17")
    A("v_lshlrev_b32 v28, 13, v30")
    A("v_and_b32 v29, 7, v0")
    A("v_lshl_add_u32 v28, v29, 3, v28")
    A("v_lshlrev_b32 v30, 2, v30")
    A(f"s_xor_b32 {s(sT3)}, {W}, {H}")
    A(f"v_xor_b32 v30, {s(sT3)}, v30")
    A("v_lshrrev_b32 v29, 1, v30")
    A("v_lshl_add_u32 v28, v29, 8, v28")
    A("v_and_b32 v29, 1, v30")
    A("v_lshl_add_u32 v28, v29, 6, v28")
    A(f"s_lshl_b32 {s(sT2)}, {W}, 16")
    A(f"v_add_u32 {v(vH1S)}, {s(sT2)}, v28")
    A(f"s_lshl_b32 {s(sT0)}, {W}, 10")

    chunks = []
    def first(A):
        l = A.newlabel("ini")
        A(f"s_cmp_lg_u32 {W}, 0")
        A(f"s_cbranch_scc1 {l}")
        A("v_mov_b32 v107, 0")
        A("v_mov_b32 v99, 1")
        A("s_mov_b64 exec, 1")
        A(f"buffer_atomic_add v99, v107, {s(SDBG,4)}, 0 offen offset:{DBG_INIT*4} sc1")
        A("s_mov_b64 exec, -1")
        A.label(l)
    for mat, sr in (('K', SWK), ('V', SWV), ('Q', SWQ)):
        for b in range(2):
            for hb in range(2):
                for q in range(2):
                    reads, post = [], []
                    tmp = 108
                    for jp in range(4):
                        j = 2 * jp + b
                        for t in range(2):
                            loc = team_opnd(mat, t, j)
                            if loc is None and j >= 4:
                                dst = v(16 + (2*(j-4)+t)*8 + 4*hb + 2*q, 2)
                            elif loc is None:
                                dst = v(tmp, 2)
                                post.append(f"ds_write_b64 {v(vWA)}, {dst} offset:{(2*j+t)*8192 + hb*1024 + q*8}")
                                tmp += 2
                            else:
                                dst = rtxt(loc, 4 * hb + 2 * q, 2)
                            reads.append(lambda R, dst=dst, jp=jp, t=t: f"ds_read_b64_tr_b16 {dst}, {v(102+jp)} offset:{R + t*32}")
                    chunks.append(dict(srd=sr, voff=100, soff=[(256*b + 128*hb + q + 8*(rr&1) + 2*(rr>>1)) * 8192 for rr in range(4)],
                                       reads=reads, post=post))
    for i in range(4):
        for hb in range(2):
            reads = []
            for q in range(2):
                for a_ in range(4):
                    loc = team_opnd('O', a_, i)
                    if loc is None: loc = ('v', 48 + OSEQ.index((a_, i)) * 8)
                    dst = rtxt(loc, 4 * hb + 2 * q, 2)
                    reads.append(lambda R, dst=dst, a_=a_, q=q: f"ds_read_b64_tr_b16 {dst}, v106 offset:{R + 2*q*ISTR + 64*a_}")
            chunks.append(dict(srd=SWO, voff=101, sbase=80+i, soff=[(8*hb + u) * 1024 for u in range(4)], reads=reads))
    chunks[0]['first'] = first
    run_loader(A, chunks, tlreg=84 if 'tl' in OPT else None)
    for i in range(8):
        for hb in range(2):
            A(f"ds_write_b128 {v(vWB)}, {v(16+i*8+hb*4,4)} offset:{i*8192 + hb*1024}")
    if 'tl' in OPT:
        A("s_memrealtime s[50:51]")
        A("s_waitcnt lgkmcnt(0)")
        A("s_mov_b32 s49, s94")
    A("v_mov_b32 v107, 0")
    A.label("L_tinit")
    A(f"buffer_load_dword v108, v107, {s(SDBG,4)}, 0 offen offset:{DBG_INIT*4} sc1")
    A("s_waitcnt vmcnt(0)")
    A("v_cmp_le_u32 vcc, 32, v108")
    A("s_cbranch_vccnz L_tinit_ok")
    poll_budget(A, "L_tinit", "L_tinit_ok")
    A.label("L_tinit_ok")

    A(f"s_mov_b32 {s(sSTEP)}, 0")
    A(f"s_mov_b32 {s(sH2)}, {WS_HOP2}")
    A(f"s_movk_i32 {s(sH2N)}, 0x2000")
    for q in range(2): A(f"s_mov_b32 {s(sH1S0+q)}, {WS_HOP1 + q*4096}")
    A(f"s_lshl_b32 {s(sT0)}, {H}, 14")
    A(f"s_lshl_b32 {s(sT1)}, {W}, 11")
    A(f"s_add_u32 {s(sT0)}, {s(sT0)}, {s(sT1)}")
    A(f"s_add_u32 {s(sKVX)}, {s(sT0)}, {WS_KVX}")
    A(f"s_add_u32 {s(sTCH)}, {s(sT1)}, 0x80000")
    A(f"s_lshl_b32 {s(sT0)}, {H}, 12")
    A(f"s_add_u32 {s(sKVM)}, {s(sT0)}, {WS_KVM}")
    A(f"s_mov_b32 {s(sCSC)}, 0x3e0293ee")
    if prof:
        for i in range(20): A(f"s_mov_b32 {s(sPROF+i)}, 0")
    NST = 14
    def stamp(k):
        if prof and not FINE: A(f"s_memtime {s(18+2*k,2)}")
    fine_n = [0]
    def fstamp(ph):
        if not (prof and FINE == ph): return []
        fine_n[0] += 1
        return [f"s_memtime {s(16+2*fine_n[0],2)}"]
    def stamp_end(n):
        if not prof: return
        if FINE: n = fine_n[0]
        if 'abs' in OPT:
            A("s_memtime s[44:45]")
            A("s_memrealtime s[46:47]")
        A("s_waitcnt lgkmcnt(0)")
        if 'abs' in OPT:
            A("s_sub_u32 s2, s44, s48"); A("s_add_u32 s50, s50, s2")
            A("s_sub_u32 s2, s46, s49"); A("s_add_u32 s51, s51, s2")
            l = A.newlabel("abs")
            A(f"s_cmp_eq_u32 {s(sSTEP)}, {ABSSTEP}")
            A(f"s_cbranch_scc0 {l}")
            for k in range(n + 1): A(f"s_mov_b32 {s(sPROF+k)}, {s(16+2*k)}")
            A.label(l)
            A(f"s_mov_b32 s16, {s(16+2*n)}")
            return
        for k in range(n):
            A(f"s_sub_u32 s2, {s(18+2*k)}, {s(16+2*k)}")
            A(f"s_add_u32 {s(sPROF+k)}, {s(sPROF+k)}, s2")
        A(f"s_mov_b32 s16, {s(16+2*n)}")

    def kv_wait(delta):
        l0, l1 = A.newlabel("kvw"), A.newlabel("kvok")
        A(f"s_add_u32 {s(sT1)}, {s(sSTEP)}, {delta}")
        A(f"s_min_u32 {s(sT1)}, {s(sT1)}, 63")
        A.label(l0)
        A(f"v_lshrrev_b32 {v(vFLAG)}, 2, {v(vL16)}")
        A(f"buffer_load_dword {v(vFLAG)}, {v(vFLAG)}, {s(SWS,4)}, {s(sFL)} offen sc1")
        A("s_waitcnt vmcnt(0)")
        A(f"v_cmp_ne_u32 {s(sRDY,2)}, {SENT}, {v(vFLAG)}")
        A("s_nop 3")
        A(f"s_bitcmp1_b64 {s(sRDY,2)}, {s(sT1)}")
        A(f"s_cbranch_scc1 {l1}")
        A("s_sleep 2")
        poll_budget(A, l0, l1)
        A.label(l1)
    def k_dma(soff):
        A(f"buffer_load_dwordx4 {v(vL16)}, {s(SWS,4)}, {s(soff)} offen sc1 lds")
        A(f"buffer_load_dwordx4 {v(vL16)}, {s(SWS,4)}, {s(soff)} offen offset:1024 sc1 lds")

    def smf(d, aop, bop): A(f"v_smfmac_f32_16x16x64_bf16 {v(d,4)}, {aop}, {bop}, {v(vIDX)}")
    def mf(d, aop, bop, c): A(f"v_mfma_f32_16x16x32_bf16 {v(d,4)}, {v(aop,4)}, {v(bop,4)}, {c}")
    KB = [RA+16, RA+24, RKX, RKX+8, RKX+16, RKX+24, RKX+32, RKX+40, RKX, RKX+8, RKX+16, RKX+24]
    def kbuf(i): return KB[i]

    A(f"s_lshl_b32 {s(sKXL)}, {W}, 11")
    A(f"s_add_u32 {s(sKXL)}, {s(sKXL)}, {L_KX}")
    A(f"s_mov_b32 {s(sCSC+1)}, {s(sCSC)}")
    A(f"s_lshl_b32 {s(sT0)}, {W}, 10")
    A(f"s_add_u32 {s(sKM)}, {s(sT0)}, {s(sKVM)}")
    A(f"s_mov_b32 {s(sONE)}, 0x3f803f80")
    A(f"s_mov_b32 {s(sONE+1)}, 0x3f803f80")
    A(f"s_lshl_b32 {s(sXO)}, {W}, 8")
    A("v_and_b32 v16, 4, v0")
    A("v_cmp_eq_u32 vcc, 0, v16")
    A("v_mov_b32 v17, 0x3f80")
    A("v_mov_b32 v18, 0x3f800000")
    A(f"v_cndmask_b32 {v(vSEL)}, v18, v17, vcc")
    A("v_and_b32 v16, 11, v0")
    for r in range(4):
        A(f"v_cmp_eq_u32 {s(sSELM+2*r,2)}, {8*(r>>1) + (r&1)}, v16")
    A(f"v_lshlrev_b32 v0, 3, v0")
    T0, T1, T2 = RS_, RS_ + 4, RS_ + 8
    G, SEL, H0, WT = RA + 8, T0, T1, vFLAG
    M, M2 = RT, RT + 1
    lg = lambda n: f"s_waitcnt lgkmcnt({n})"
    def kwr(i, hb):
        base, off = (vWA, i * 8192) if i < 8 else (vWB, (i - 8) * 8192)
        return f"ds_read_b128 {v(kbuf(i)+4*hb,4)}, {v(base)} offset:{off + hb*1024}"
    zero_acc = [f"v_mov_b64 {v(r,2)}, 0" for r in range(RK, RV + 8, 2)]
    kpre = [kwr(i, hb) for i in range(8) for hb in range(2)]
    def step_scalars():
        A(f"s_add_u32 {s(sVX)}, {s(sKVX)}, 8192")
        A(f"s_add_u32 {s(sTC2)}, {s(sKVX)}, {s(sTCH)}")
        if 'nokvx' not in OPT: A(f"s_add_u32 {s(sKVX)}, {s(sKVX)}, 0x80000")
        A(f"s_add_u32 {s(sFS)}, {s(sSTEP)}, 2")
        A(f"s_min_u32 {s(sFS)}, {s(sFS)}, 63")
    def dma2(soff):
        return [f"buffer_load_dwordx4 {v(vL16)}, {s(SWS,4)}, {s(soff)} offen sc1 lds",
                f"buffer_load_dwordx4 {v(vL16)}, {s(SWS,4)}, {s(soff)} offen offset:1024 sc1 lds"]
    def pol2(soff):
        return [f"buffer_load_dwordx4 {v(vP)}, {s(SWS,4)}, {s(soff)} offen sc1 lds",
                f"buffer_load_dwordx4 {v(vP)}, {s(SWS,4)}, {s(soff+1)} offen offset:1024 sc1 lds"]
    cr = lambda a_: [f"ds_read_b128 {v(RA+8*a_+4*b,4)}, {v(vL16)} offset:{L_MEM + a_*2048 + b*1024}" for b in range(2)]
    def chk(R, exact=False):
        o = [f"v_max3_u32 {v(WT)}, {v(R)}, {v(R+1)}, {v(R+2)}", f"v_max3_u32 {v(WT)}, {v(WT)}, {v(R+3)}, {v(R+4)}",
             f"v_max3_u32 {v(WT)}, {v(WT)}, {v(R+5)}, {v(R+6)}"]
        if exact: return o + [f"v_max_u32 {v(WT)}, {v(WT)}, {v(R+7)}", f"v_cmp_eq_u32 vcc, {SENT}, {v(WT)}"]
        return o + [f"v_cmp_u_f32 vcc, {v(WT)}, {v(R+7)}"]
    def watch(name, lok, R, body):
        A.label(name)
        for b_ in body:
            for x in chk(R) + b_: A(x)
            A(f"s_cbranch_vccz {lok}")
        A(f"s_sub_u32 {s(sBD2)}, {s(sBD2)}, 1")
        A(f"s_cbranch_scc0 {name}")
        A(f"s_movk_i32 {s(sBD2)}, 32")
        for x in chk(R, True) + body[0]: A(x)
        A(f"s_cbranch_vccz {lok}")
        A(f"s_sub_u32 {s(sBUD)}, {s(sBUD)}, 64")
        A(f"s_cbranch_scc0 {name}")
        A(f"s_mov_b32 {s(sBUD)}, 0")
        A(f"s_branch {lok}")
    kv_wait(0)
    A(f"s_mov_b32 m0, {s(sKXL)}")
    k_dma(sKVX)
    kv_wait(1)
    A(f"s_xor_b32 {s(sH1R)}, {s(sH1L)}, 0x40000")
    step_scalars()
    A(f"s_add_u32 {s(sH2P)}, {s(sH2)}, {s(sCLS)}")
    p2l = [f"buffer_load_dwordx4 {v(RA+4*i,4)}, {v(vP)}, {s(SWS,4)}, {s(sH2P)} offen offset:{i*2048} sc1" for i in range(2)]
    A(p2l[0]); A(p2l[1])
    A(f"s_movk_i32 {s(sBD2)}, 32")
    A("s_waitcnt vmcnt(0) lgkmcnt(0)")
    for x in kpre + zero_acc: A(x)
    if prof:
        A("s_memtime s[16:17]")
        A("s_memrealtime s[46:47]")
        A("s_waitcnt lgkmcnt(0)")
        A("s_mov_b32 s48, s16"); A("s_mov_b32 s49, s46"); A("s_mov_b32 s50, 0"); A("s_mov_b32 s51, 0")
    if 'tl' in OPT:
        A(f"s_lshl_b32 s48, {H}, 2")
        A(f"s_add_u32 s48, s48, {W}")
        A("s_lshl_b32 s48, s48, 10")
        A(f"s_add_u32 s48, s48, {WS_PROF}")
        A("s_memrealtime s[44:45]")
        A(lg(0))
        A(f"v_mov_b32 {v(RVX)}, s44")
        A(f"v_mov_b32 {v(RVX+1)}, s4")
        A(f"buffer_store_dwordx2 {v(RVX,2)}, off, {s(SWS,4)}, s48")
        A(f"v_mov_b32 {v(RVX)}, s49")
        A(f"v_mov_b32 {v(RVX+1)}, s50")
        A(f"buffer_store_dwordx2 {v(RVX,2)}, off, {s(SWS,4)}, s48 offset:1000")
        for i in range(8):
            A(f"v_mov_b32 {v(RVX)}, s{84+i}")
            A(f"buffer_store_dword {v(RVX)}, off, {s(SWS,4)}, s48 offset:{960+4*i}")
    A(lg(0))
    A.label("L_p2ok")
    stamp(0)
    def mq(t, j): smf(RQ + 4*t, v(RA+4*j,4), rtxt(team_opnd('Q', t, j),0,8))
    def mk(t, j):
        loc = team_opnd('K', t, j)
        smf(RK + 4*t, v(RA+4*j,4), rtxt(loc,0,8) if loc else v(kbuf(2*j+t),8))
    def mv(t, j): smf(RV + 4*t, v(RA+4*j,4), rtxt(team_opnd('V', t, j),0,8))
    run_n = [0]
    def run(ms, gaps):
        run_n[0] += 1
        for x in fstamp(run_n[0]): A(x)
        for i, (f_, t_, j_) in enumerate(ms):
            f_(t_, j_)
            for x in gaps.get(i, ()): A(x)
            if (i + 1) % FSTEP == 0 or i == len(ms) - 1:
                for x in fstamp(run_n[0]): A(x)
        assert all(k < len(ms) for k in gaps)
    qk = lambda j: [(mq, 0, j), (mk, 0, j), (mq, 1, j), (mk, 1, j)]
    vv = lambda j: [(mv, 0, j), (mv, 1, j)]
    kx = [f"ds_read_b128 {v(RKX+4*i,4)}, {v(vL16)} offset:{L_KX + i*1024}" for i in range(8)]
    def comb(t):
        return [f"v_add_f32 {v(RQ+4*t)}, {v(RQ+4*t)}, {v(RQ+4*t+2)}", f"v_add_f32 {v(RQ+4*t+1)}, {v(RQ+4*t+1)}, {v(RQ+4*t+3)}",
                f"v_add_f32 {v(RK+4*t)}, {v(RK+4*t)}, {v(RK+4*t+2)}", f"v_add_f32 {v(RK+4*t+1)}, {v(RK+4*t+1)}, {v(RK+4*t+3)}",
                f"v_cvt_pk_bf16_f32 {v(RK+4*t)}, {v(RK+4*t)}, {v(RK+4*t+1)}",
                f"v_cvt_pk_bf16_f32 {v(RK+4*t+1)}, {v(RQ+4*t)}, {v(RQ+4*t+1)}",
                f"ds_write_b64 {v(vQKW)}, {v(RK+4*t,2)} offset:{t*128}"]
    c0, c1 = comb(0), comb(1)
    A(f"ds_write_b128 {v(vMW)}, {v(RA,4)} offset:{L_MEM}")
    A(f"ds_write_b128 {v(vMW)}, {v(RA+4,4)} offset:{L_MEM+1024}")
    run([(mq,0,0),(mq,1,0),(mk,0,0),(mk,1,0)] + vv(0),
        {0: [f"buffer_load_dwordx4 {v(RVX,4)}, {v(vL16)}, {s(SWS,4)}, {s(sVX)} offen sc1"],
         1: [f"buffer_load_dwordx4 {v(RVX+4,4)}, {v(vL16)}, {s(SWS,4)}, {s(sVX)} offen offset:1024 sc1", lg(2)],
         2: [f"v_lshlrev_b32 {v(vFLAG)}, 2, {v(vL16)}"],
         5: [lg(0), "s_barrier"]})
    stamp(1)
    mr = [f"ds_read_b128 {v(RA+(2*p+b)*4,4)}, {v(r)} offset:{L_MEM + b*1024}" for p, r in ((1, vMR1), (2, vMR2), (3, vMR3)) for b in range(2)]
    A(mr[0])
    g = {i: [] for i in range(34)}
    g[0] += [mr[1]]
    g[1] += [f"buffer_load_dword {v(vFLAG)}, {v(vFLAG)}, {s(SWS,4)}, {s(sTC2)} offen sc1"]
    g[2] += [mr[2]]; g[3] += [mr[3]]; g[4] += [kwr(8, 0), lg(4)]
    g[5] += [kwr(8, 1)]; g[6] += [kwr(9, 0)]; g[7] += [kwr(9, 1)]; g[8] += [mr[4], lg(5)]
    g[9] += [mr[5]]; g[10] += [kwr(10, 0)]; g[11] += [kwr(10, 1)]; g[12] += [kwr(11, 0), lg(5)]
    g[13] += [kwr(11, 1), f"v_lshrrev_b32 {v(RT)}, 2, {v(vL16)}"]
    g[14] += [f"buffer_load_dword {v(vFLAG)}, {v(RT)}, {s(SWS,4)}, {s(sFL)} offen sc1"]
    g[15] += [kx[0]]; g[16] += [kx[1], lg(4)]
    g[17] += [kx[2], f"v_mov_b64 {v(RT,2)}, -1"]; g[18] += [kx[3], f"v_mov_b64 {v(RT+2,2)}, -1"]
    g[19] += [kx[4], lg(5)]; g[20] += [kx[5]]; g[21] += [kx[6]]; g[22] += [kx[7]]
    rs = [f"buffer_store_dwordx4 {v(RT,4)}, {v(vP)}, {s(SWS,4)}, {s(sH1R)} offen offset:{i*2048}" for i in range(2)]
    if RSM == 0:
        g[23] += [rs[0]]; g[31] += [rs[1]]
    g[24] += [f"s_waitcnt vmcnt({3 if RSM == 0 else 2})"]
    g[31] += [f"v_mov_b32 {v(RA)}, {v(RK)}"]; g[32] += [f"v_mov_b32 {v(RA+1)}, {v(RK+4)}"]
    g[25] += [c0[0]]; g[26] += [c0[1]]; g[27] += [c0[2]]; g[28] += [c0[3], c0[4], c0[5]]
    g[29] += [c0[6], c1[0], c1[1]]
    g[30] += c1[2:]
    g[33] += [lg(0), "s_barrier"]
    run(qk(1) + [(mv,0,1)] + qk(2) + qk(3) + qk(4) + qk(5) +
        [(mq,0,6),(mk,0,6),(mq,0,7),(mk,0,7),(mq,1,6),(mq,1,7),(mk,1,6),(mk,1,7)] + [(mv,1,1)] + vv(2) + vv(3), g)
    stamp(2)
    xr = [f"ds_read_b64_tr_b16 {v(RX+4*ks+2*q,2)}, {v(vXR)} offset:{(32*ks+16*q)*8}" for ks in range(4) for q in range(2)]
    A(xr[0]); A(xr[1])
    g = {i: [xr[2+i]] for i in range(6)}
    kd = dma2(sKVX)
    g[6] = [kd[0]]
    g[7] = [kd[1], lg(2)]
    run(vv(4) + vv(5) + vv(6) + vv(7), g)
    stamp(3)
    O0, O1, LL = RX + 8, RX + 12, T2
    ONE, PM = RKX, RKX + 4
    obuf = lambda i: (RA + 8 + 8*i) if i < 3 else RKX + 8
    wo = [f"ds_read_b128 {v(obuf(i)+4*hb,4)}, {v(vWB)} offset:{(4+i)*8192 + hb*1024}" for i in range(4) for hb in range(2)]
    def ms(T, ks):
        aop = {T2: RX + 4*ks, T0: RKX + 4*ks, T1: RKX + 16 + 4*ks}[T]
        mf(T, aop, RX + 4*ks, "0" if ks == 0 else v(T,4))
    g = {0: [wo[0]],
         1: [f"v_add_f32 {v(RV)}, {v(RV)}, {v(RV+2)}", f"v_add_f32 {v(RV+1)}, {v(RV+1)}, {v(RV+3)}"],
         2: [lg(1), f"v_add_f32 {v(RV+4)}, {v(RV+4)}, {v(RV+6)}", f"v_add_f32 {v(RV+5)}, {v(RV+5)}, {v(RV+7)}"],
         3: [f"v_cvt_pk_bf16_f32 {v(RA+2)}, {v(RV)}, {v(RV+1)}", f"v_cvt_pk_bf16_f32 {v(RA+3)}, {v(RV+4)}, {v(RV+5)}"],
         4: [f"buffer_store_dwordx4 {v(RA,4)}, {v(vL16)}, {s(SWS,4)}, {s(sKM)} offen sc1"],
         5: [f"s_cmp_eq_u32 {s(sSTEP)}, {nsteps-1}", f"v_mov_b32 {v(RV)}, {v(RA+2)}", f"v_mov_b32 {v(RV+4)}, {v(RA+3)}"],
         6: ["s_cbranch_scc1 L_team_done", f"v_mov_b64 {v(RV+2,2)}, 0"],
         7: [wo[1], f"v_mov_b32 {v(RV+1)}, 0"],
         8: [wo[2], f"v_mov_b32 {v(RV+5)}, 0"],
         9: [wo[3], f"v_mov_b64 {v(RV+6,2)}, 0"],
         10: [f"v_mov_b64 {v(ONE,2)}, {s(sONE,2)}", f"v_max3_f32 {v(M)}, {v(T2)}, {v(T2+1)}, {v(T0)}"],
         11: [f"v_max3_f32 {v(M2)}, {v(T0+1)}, {v(T0+2)}, {v(T0+3)}", f"v_mov_b64 {v(ONE+2,2)}, {s(sONE,2)}",
              f"v_mov_b32 {v(PM+1)}, 0", f"v_mov_b64 {v(PM+2,2)}, 0", f"v_max_f32 {v(M)}, {v(M)}, {v(M2)}"]}
    run([(ms, T, ks) for T in (T2, T0, T1) for ks in range(4)], g)
    stamp(4)
    A(f"v_max3_f32 {v(M)}, {v(M)}, {v(T1)}, {v(T1+1)}")
    A(f"v_max3_f32 {v(M2)}, {v(M)}, {v(T1+2)}, {v(T1+3)}")
    A(f"v_max3_f32 {v(M)}, {v(M)}, {v(T1+2)}, {v(T1+3)}")
    A(f"v_permlane32_swap_b32 {v(M)}, {v(M2)}")
    A(f"v_max_f32 {v(RT+3)}, {v(M)}, {v(M2)}")
    A(f"v_max_f32 {v(M)}, {v(M)}, {v(M2)}")
    A(f"v_permlane16_swap_b32 {v(M)}, {v(RT+3)}")
    A(f"v_max_f32 {v(M)}, {v(M)}, {v(RT+3)}")
    A(f"v_mul_f32 {v(M)}, {s(sCSC)}, {v(M)}")
    def pkf(r): A(f"v_pk_fma_f32 {v(r,2)}, {v(r,2)}, {s(sCSC,2)}, {v(M,2)} op_sel_hi:[1,1,0] neg_lo:[0,0,1] neg_hi:[0,0,1]")
    for r in (T2, T0, T0+2, T1, T1+2): pkf(r)
    ex = lambda r: A(f"v_exp_f32 {v(r)}, {v(r)}")
    ex(T2); ex(T2+1); ex(T0)
    A(f"v_cvt_pk_bf16_f32 {v(PM)}, {v(T2)}, {v(T2+1)}")
    ex(T0+1); ex(T0+2)
    mf(O0, RV, PM, "0")
    ex(T0+3)
    mf(O1, RV+4, PM, "0")
    ex(T0+4)
    mf(LL, ONE, PM, "0")
    ex(T0+5)
    A(f"v_cvt_pk_bf16_f32 {v(T0)}, {v(T0)}, {v(T0+1)}")
    ex(T0+6)
    A(f"v_cvt_pk_bf16_f32 {v(T0+1)}, {v(T0+2)}, {v(T0+3)}")
    ex(T0+7)
    A(f"v_cvt_pk_bf16_f32 {v(T0+2)}, {v(T0+4)}, {v(T0+5)}")
    A(f"v_cvt_pk_bf16_f32 {v(T0+3)}, {v(T0+6)}, {v(T0+7)}")
    stamp(5)
    oacc = [RV, RV + 4, RX, RX + 4]
    zl = [f"v_mov_b64 {v(r+h,2)}, 0" for r in oacc for h in (0, 2)]
    A(zl.pop(0)); A(zl.pop(0))
    mf(LL, ONE, T0, v(LL,4))
    A(wo[4]); A(zl.pop(0))
    mf(O0, RVX, T0, v(O0,4))
    A(wo[5]); A(zl.pop(0))
    mf(O1, RVX+4, T0, v(O1,4))
    A(wo[6])
    DUP = "quad_perm:[2,3,2,3] row_mask:0xf bank_mask:0xf"
    A(f"v_rcp_f32_dpp {v(M)}, {v(LL)} {DUP}")
    A(zl.pop(0)); A(zl.pop(0))
    for r in range(O0, O0 + 4): A(f"v_mul_f32_dpp {v(r)}, {v(r)}, {v(M)} {DUP}")
    A(f"v_cvt_pk_bf16_f32 {v(O0)}, {v(O0)}, {v(O0+1)}")
    A(f"v_cvt_pk_bf16_f32 {v(O0+1)}, {v(O0+2)}, {v(O0+3)}")
    for r in range(O1, O1 + 4): A(f"v_mul_f32_dpp {v(r)}, {v(r)}, {v(M)} {DUP}")
    A(f"v_cvt_pk_bf16_f32 {v(O0+2)}, {v(O1)}, {v(O1+1)}")
    A(f"v_cvt_pk_bf16_f32 {v(O0+3)}, {v(O1+2)}, {v(O1+3)}")
    A(f"ds_write_b128 {v(vMW)}, {v(O0,4)} offset:{L_O}")
    stamp(6)
    OA = [O0, O1, RVX, RVX + 4]
    def mo(a_, i):
        loc = team_opnd('O', a_, i)
        smf(oacc[a_], v(OA[i],4), rtxt(loc,0,8) if loc else v(obuf(OSEQ.index((a_, i))),8))
    oar = [f"ds_read_b128 {v(OA[p],4)}, {v(r)} offset:{L_O}" for p, r in ((1, vMR1), (2, vMR2), (3, vMR3))]
    def o_fin(a_):
        x = oacc[a_]
        return [f"v_cvt_pk_bf16_f32 {v(x)}, {v(x)}, {v(x+1)}",
                f"v_cvt_pk_bf16_f32 {v(x+1)}, {v(x+2)}, {v(x+3)}",
                f"buffer_store_dwordx2 {v(x,2)}, {v(vH1S)}, {s(SWS,4)}, {s(sH1S0+(a_>>1))} offen offset:{(a_&1)*128}"]
    arm = lambda R: [f"v_mov_b64 {v(R+i,2)}, -1" for i in range(0, 8, 2)]
    sl = [f"v_cndmask_b32 {v(SEL+i)}, 0, {v(vSEL)}, {s(sSELM+2*i,2)}" for i in range(4)]
    DSC = '' if 'plaindma' in OPT else 'sc1'
    A(lg(2))
    ag, aa = arm(G), arm(RA)
    f0, f1, f2, f3 = o_fin(0), o_fin(1), o_fin(2), o_fin(3)
    g = {0: [wo[7], zl[0]], 1: [zl[1]], 2: [ag[0], ag[1], ag[2], lg(0), "s_barrier"] + oar,
         3: [ag[3], sl[0], sl[1], sl[2], sl[3], lg(2)],
         4: [lg(1), aa[0]], 5: [lg(0), aa[1]], 6: [aa[2]], 7: [aa[3]], 8: [f0[0], f0[1]], 9: [f0[2]],
         11: [f1[0], f1[1]], 12: [f1[2]], 14: [f2[0], f2[1]], 15: [f2[2]] + f3}
    if 'c0only' in OPT:
        for k_ in g: g[k_] = [x for x in g[k_] if x not in (f1[2], f2[2], f3[2])]
    run([(mo, a_, i) for a_, i in OSEQ], g)
    stamp(7)
    p1l = [f"buffer_load_dwordx4 {v(G+4*i,4)}, {v(vP)}, {s(SWS,4)}, {s(sH1L)} offen offset:{i*2048} sc1" for i in range(2)]
    spec1 = [f"v_mfma_f32_16x16x32_bf16 {v(H0,4)}, {v(SEL,4)}, {v(G,4)}, 0",
             f"v_mfma_f32_16x16x32_bf16 {v(H0,4)}, {v(SEL,4)}, {v(G+4,4)}, {v(H0,4)}"]
    def tail():
        keep = f"v_mov_b32 {v(WT)}, 0"
        A("s_waitcnt vmcnt(5)")
        A(f"v_cmp_ne_u32 {s(sRDY,2)}, {SENT}, {v(vFLAG)}")
        for i in range(12):
            if S1 >> i & 1:
                A(p1l[0]); A(p1l[1])
            if i < K1: A(kpre[i])
            A(zero_acc[i])
        A(f"s_bitcmp1_b64 {s(sRDY,2)}, {s(sFS)}")
        A("s_cbranch_scc0 L_kvslow")
        A.label("L_kvback")
        A(f"s_xor_b32 {s(sH2P)}, {s(sH2P)}, 0x2000")
        A(f"s_xor_b32 {s(sT0)}, {s(sH2N)}, 0x2000")
        stamp(8)
        watch("L_p1", "L_p1ok", G, [spec1 + (p1l if ch == '1' else []) for ch in PAT1])
        A.label("L_p1ok")
        stamp(9)
        A("s_nop 6")
        ROR = lambda n: f"row_ror:{n} row_mask:0xf bank_mask:0xf"
        A(f"v_add_f32_dpp {v(H0)}, {v(H0)}, {v(H0)} {ROR(8)}")
        A(f"v_add_f32_dpp {v(H0+1)}, {v(H0+1)}, {v(H0+1)} {ROR(8)}")
        A(f"s_mov_b32 {s(sH1R)}, {s(sH1L)}")
        A(f"v_add_f32_dpp {v(H0)}, {v(H0)}, {v(H0)} {ROR(4)}")
        A(f"v_add_f32_dpp {v(H0+1)}, {v(H0+1)}, {v(H0+1)} {ROR(4)}")
        A(f"v_cvt_pk_bf16_f32 {v(H0)}, {v(H0)}, {v(H0+1)}")
        A(f"buffer_store_dword {v(H0)}, {v(vH2S)}, {s(SWS,4)}, {s(sH2N)} offen")
        stamp(10)
        A(f"buffer_store_dword {v(RA)}, {v(vH2S)}, {s(SWS,4)}, {s(sT0)} offen")
        if RSM == 1:
            for i in range(2): A(f"buffer_store_dwordx4 {v(RA,4)}, {v(vP)}, {s(SWS,4)}, {s(sH1L)} offen offset:{i*2048}")
        sc = [f"s_mov_b32 {s(sH2N)}, {s(sT0)}", f"s_xor_b32 {s(sH1L)}, {s(sH1L)}, 0x40000",
              f"s_xor_b32 {s(sH1S0)}, {s(sH1S0)}, 0x40000", f"s_xor_b32 {s(sH1S0+1)}, {s(sH1S0+1)}, 0x40000",
              f"s_add_u32 {s(sKM)}, {s(sKM)}, 0x20000",
              f"s_add_u32 {s(sSTEP)}, {s(sSTEP)}, 1"]
        for i, x in enumerate(kpre[K1:]):
            if S2 >> i & 1:
                A(p2l[0]); A(p2l[1])
            A(x)
            if sc: A(sc.pop(0))
            A(keep)
        for x in sc: A(x)
        step_scalars()
        stamp_end(11)
        if 'tl' in OPT:
            A("s_memrealtime s[44:45]")
            A("s_memtime s[46:47]")
            A(f"s_lshl_b32 {s(sT1)}, {s(sSTEP)}, 3")
            A(f"s_add_u32 {s(sT1)}, {s(sT1)}, s48")
            A(lg(0))
            A(f"v_mov_b32 {v(RVX)}, s44")
            A(f"v_mov_b32 {v(RVX+1)}, s46")
            A(f"buffer_store_dwordx2 {v(RVX,2)}, off, {s(SWS,4)}, {s(sT1)}")
        watch("L_p2", "L_p2ok", RA, [(p2l if ch == '1' else []) for ch in PAT2])
    tail()
    A.label("L_kvslow")
    kv_wait(2)
    A("s_branch L_kvback")
    A.label("L_team_done")
    if prof:
        A(f"s_lshl_b32 {s(sT0)}, {H}, 2")
        A(f"s_add_u32 {s(sT0)}, {s(sT0)}, {W}")
        A(f"s_lshl_b32 {s(sT0)}, {s(sT0)}, 7")
        A(f"s_add_u32 {s(sT0)}, {s(sT0)}, {WS_PROF}")
        A("v_mov_b32 v16, 0")
        A("s_memrealtime s[38:39]")
        A("s_waitcnt lgkmcnt(0)")
        for i, r in enumerate((44, 46, 48, 49, 50, 51, 38, 4)): A(f"s_mov_b32 {s(sPROF+12+i)}, s{r}")
        for i in range(20):
            A(f"v_mov_b32 v17, {s(sPROF+i)}")
            A(f"buffer_store_dword v17, v16, {s(SWS,4)}, {s(sT0)} offen offset:{4*i}")
    A("s_waitcnt vmcnt(0)")
    A("s_endpgm")

def build(prof=False, team_only=False):
    A = Asm()
    prologue(A)
    A(f"s_cmp_eq_u32 {s(sXCC)}, 0")
    A("s_cbranch_scc1 L_team")
    if team_only:
        A("s_endpgm")
    else:
        import worker
        worker.worker(A, sys.modules[__name__])
    team(A, prof=prof)
    A.label("L_end")
    A("s_endpgm")
    body = A.finish()
    hdr = open("cdna_kernels/" + NAME + ".s.ref").read().split("; Override launch")[0]
    txt = hdr + f"""; @launch grid=(256,1,1) block=(256,1,1) lds=163840
.amdgcn_target "amdgcn-amd-amdhsa--gfx950"
.text
.globl {KN}
.p2align 8
.type {KN},@function
{KN}:
{body}.section .rodata,"a"
.p2align 6
.amdhsa_kernel {KN}
  .amdhsa_next_free_vgpr 512
  .amdhsa_next_free_sgpr 102
  .amdhsa_accum_offset 256
  .amdhsa_group_segment_fixed_size 0
  .amdhsa_kernarg_size 112
  .amdhsa_user_sgpr_count 2
  .amdhsa_user_sgpr_kernarg_segment_ptr 1
  .amdhsa_system_sgpr_workgroup_id_x 1
  .amdhsa_float_denorm_mode_32 3
.end_amdhsa_kernel
"""
    return txt

if __name__ == "__main__":
    out = sys.argv[1]
    txt = build(prof="prof" in sys.argv[2:], team_only="team" in sys.argv[2:])
    open(out, "w").write(txt)
```

```python
from asmlib import *

def worker(A, G):
    g_ = G.__dict__
    (SX, SWS, SDBG, SWQ, SWK, SWV, SWO, SWG, SWU, SWD, SOUT) = [g_[k] for k in
        "SX SWS SDBG SWQ SWK SWV SWO SWG SWU SWD SOUT".split()]
    sT0, sT1, sT2, sT3, sBUD = G.sT0, G.sT1, G.sT2, G.sT3, G.sBUD
    W, H, X = s(G.sWAVE), s(G.sRANK), s(G.sXCC)
    ISTR, SENT = G.ISTR, G.SENT
    sREP, sSEG, sBUF, sRSB, sA, sB, sC, sD, sHM, sCS = 60, 61, 62, 63, 64, 65, 66, 67, 68, 70
    sRO = 72
    sE, sF = 80, 81
    vL16, vR16, vG, vL8 = 2, 3, 4, 5
    lg = lambda n: f"s_waitcnt lgkmcnt({n})"
    L_XT, L_OI = 98304, 0
    def mf(d, aop, bop, c): A(f"v_mfma_f32_16x16x32_bf16 {d}, {aop}, {bop}, {c}")
    LISTS = [[0, 2, 4, 6, 8], [1, 3, 5, 7, 9]] + [[] for _ in range(5)]
    for sg in range(10, 35): LISTS[2 + (sg - 10) % 5].append(sg)
    for sg in range(35, 64): LISTS[(sg - 35 + 1) % 7 if sg < 63 else 1].append(sg)
    assert sorted(sum(LISTS, [])) == list(range(64)) and max(map(len, LISTS)) <= 10 and min(map(len, LISTS)) >= 9, LISTS
    G.SEGLISTS = LISTS
    sLST, sCUR, sNS, sIT, sPRV, sTHR = 82, 88, 90, 91, 92, 93
    def seg_loop(name, body):
        A(f"s_mov_b64 {s(sCUR,2)}, {s(sLST,2)}")
        A(f"s_mov_b32 {s(sIT)}, 0")
        A.label(name)
        A(f"s_and_b32 {s(sSEG)}, {s(sCUR)}, 63")
        A(f"s_lshr_b64 {s(sCUR,2)}, {s(sCUR,2)}, 6")
        body()
        A(f"s_mov_b32 {s(sPRV)}, {s(sSEG)}")
        A(f"s_add_u32 {s(sIT)}, {s(sIT)}, 1")
        A(f"s_cmp_lt_u32 {s(sIT)}, {s(sNS)}")
        A(f"s_cbranch_scc1 {name}")

    tl = 'tl' in G.OPT
    def wst(k):
        if not tl: return
        A("s_memrealtime s[94:95]")
        A("s_waitcnt lgkmcnt(0)")
        A("v_mov_b32 v15, s94")
        A(f"buffer_store_dword v15, off, {s(SWS,4)}, s86 offset:{4*k}")
    def wst_seg(k):
        if not tl: return
        A("s_memrealtime s[94:95]")
        A(f"s_lshl_b32 s87, {s(sSEG)}, 2")
        A("s_add_u32 s87, s87, s86")
        A("s_waitcnt lgkmcnt(0)")
        A("v_mov_b32 v15, s94")
        A(f"buffer_store_dword v15, off, {s(SWS,4)}, s87 offset:{256*k}")
    A.label("L_worker")
    if tl:
        A(f"s_lshl_b32 s86, {X}, 5")
        A(f"s_add_u32 s86, s86, {H}")
        A("s_lshl_b32 s86, s86, 2")
        A(f"s_add_u32 s86, s86, {W}")
        A("s_lshl_b32 s86, s86, 10")
        A(f"s_add_u32 s86, s86, {G.WS_PROF}")
        A("v_mov_b32 v15, s96")
        A(f"buffer_store_dword v15, off, {s(SWS,4)}, s86")
    A(f"s_sub_u32 {s(sREP)}, {X}, 1")
    for r, l in enumerate(LISTS):
        w64 = sum(sg << (6 * i) for i, sg in enumerate(l))
        if r == 0:
            A(f"s_mov_b32 {s(sLST)}, {w64 & 0xffffffff:#x}"); A(f"s_mov_b32 {s(sLST+1)}, {w64 >> 32:#x}"); A(f"s_mov_b32 {s(sNS)}, {len(l)}")
        else:
            A(f"s_cmp_eq_u32 {s(sREP)}, {r}")
            A(f"s_cselect_b32 {s(sLST)}, {w64 & 0xffffffff:#x}, {s(sLST)}")
            A(f"s_cselect_b32 {s(sLST+1)}, {w64 >> 32:#x}, {s(sLST+1)}")
            A(f"s_cselect_b32 {s(sNS)}, {len(l)}, {s(sNS)}")
    A(f"s_cmp_ge_u32 {s(sREP)}, {G.NEARLY}")
    A(f"s_cselect_b32 {s(sTHR)}, 1, 0")
    A(f"v_lshlrev_b32 {v(vL16)}, 4, v0")
    A(f"v_and_b32 {v(vR16)}, 15, v0")
    A(f"v_lshrrev_b32 {v(vG)}, 4, v0")
    A(f"v_lshlrev_b32 {v(vL8)}, 3, v0")
    A(f"v_and_b32 v18, 1, {v(vG)}")
    A("v_lshlrev_b32 v25, 3, v18")
    A(f"v_xor_b32 v25, v25, {v(vR16)}")
    A("v_lshlrev_b32 v25, 4, v25")
    A(f"v_lshl_add_u32 v25, {v(vG)}, 16, v25")
    A(f"s_lshl_b32 {s(sT0)}, {W}, 20")
    A(f"s_lshl_b32 {s(sT1)}, {H}, 8")
    A(f"s_add_u32 {s(sT0)}, {s(sT0)}, {s(sT1)}")
    A(f"v_add_u32 v6, {s(sT0)}, v25")
    A("v_bfe_u32 v25, v0, 2, 2")
    A(f"v_mul_u32_u24 v25, {ISTR}, v25")
    A(f"v_lshl_add_u32 v25, {v(vG)}, 8, v25")
    A("v_and_b32 v26, 3, v0")
    A("v_lshlrev_b32 v27, 7, v18")
    A(f"s_lshl_b32 {s(sT0)}, {W}, 6")
    A(f"v_xor_b32 v27, {s(sT0)}, v27")
    A("v_lshl_add_u32 v27, v26, 3, v27")
    A("v_add_u32 v7, v27, v25")
    A(f"v_lshlrev_b32 v27, 12, {v(vG)}")
    A(f"v_lshl_add_u32 v27, {v(vR16)}, 4, v27")
    A(f"s_lshl_b32 {s(sT0)}, {W}, 8")
    A(f"v_add_u32 v8, {s(sT0)}, v27")
    A("v_lshl_add_u32 v27, v26, 3, v25")
    A(f"s_lshl_b32 {s(sT0)}, {W}, 10")
    A(f"v_add_u32 v9, {s(sT0)}, v27")
    A("v_bfe_u32 v27, v0, 3, 1")
    A(f"v_lshl_add_u32 v27, {v(vG)}, 3, v27")
    A(f"s_lshl_b32 {s(sT0)}, {W}, 7")
    A(f"v_add_u32 v27, {s(sT0)}, v27")
    A("v_mul_u32_u24 v27, 2752, v27")
    A("v_and_b32 v28, 7, v0")
    A("v_lshl_add_u32 v27, v28, 4, v27")
    A(f"s_lshl_b32 {s(sT0)}, {H}, 7")
    A(f"v_add_u32 v10, {s(sT0)}, v27")
    A("v_bfe_u32 v27, v0, 3, 1")
    A(f"v_mul_u32_u24 v27, {ISTR}, v27")
    A(f"v_lshl_add_u32 v27, {v(vG)}, 8, v27")
    A("v_bfe_u32 v28, v0, 2, 1")
    A("v_lshl_add_u32 v27, v28, 7, v27")
    A("v_lshl_add_u32 v27, v26, 3, v27")
    A(f"s_lshl_b32 {s(sT0)}, {W}, 5")
    A(f"v_add_u32 v11, {s(sT0)}, v27")
    A(f"v_lshlrev_b32 v27, 10, {v(vG)}")
    A(f"v_lshl_add_u32 v27, {v(vR16)}, 4, v27")
    A(f"s_lshl_b32 {s(sT0)}, {W}, 8")
    A(f"v_add_u32 v12, {s(sT0)}, v27")
    A(f"s_lshl_b32 {s(sRSB)}, {s(sREP)}, 21")
    A(f"s_add_u32 {s(sRSB)}, {s(sRSB)}, {G.WS_RS}")

    def proj_chunks(srd, tile0):
        out = []
        for b in range(2):
            for hb in range(2):
                for q in range(2):
                    reads = []
                    for p in range(4):
                        for t in range(2):
                            dst = a(((tile0 + t) * 16 + 4*p + 2*b + hb) * 4 + 2*q, 2)
                            reads.append(lambda R, dst=dst, p=p, t=t: f"ds_read_b64_tr_b16 {dst}, v7 offset:{R + p*1024 + t*32}")
                    out.append(dict(srd=srd, voff=6, soff=[(64*b + 32*hb + 4*q + rr) * 8192 for rr in range(4)], reads=reads))
        return out

    def init_work(A):
        A("v_lshrrev_b32 v36, 2, v0")
        A("v_lshlrev_b32 v36, 10, v36")
        A("v_and_b32 v37, 3, v0")
        A("v_lshl_add_u32 v36, v37, 8, v36")
        A(f"s_lshr_b32 {s(sA)}, {H}, 4")
        A(f"s_lshl_b32 {s(sA)}, {s(sA)}, 14")
        A(f"s_and_b32 {s(sB)}, {H}, 15")
        A(f"s_lshl_b32 {s(sB)}, {s(sB)}, 4")
        A(f"s_add_u32 {s(sC)}, {s(sA)}, {s(sB)}")
        A(f"s_mov_b32 {s(sIT)}, {W}")
        A(f"s_mov_b32 {s(sD)}, 0xffff0000")
        A("s_waitcnt vmcnt(16)")
        A.label("L_wk_ln")
        A(f"s_mul_i32 {s(sA)}, {s(sIT)}, 6")
        A(f"s_lshr_b64 {s(sCUR,2)}, {s(sLST,2)}, {s(sA)}")
        A(f"s_and_b32 {s(sSEG)}, {s(sCUR)}, 63")
        for i in range(4):
            A(f"v_mov_b32 {v(40+i)}, {v(60+i)}")
            A(f"v_mov_b32 {v(60+i)}, {v(64+i)}")
            A(f"v_mov_b32 {v(64+i)}, {v(68+i)}")
        for i in range(4):
            A(f"v_lshlrev_b32 {v(44+2*i)}, 16, {v(40+i)}")
            A(f"v_and_b32 {v(45+2*i)}, {s(sD)}, {v(40+i)}")
        def wsum(r, t):
            for n in (1, 2, 4, 8):
                A(f"v_add_f32_dpp {v(r)}, {v(r)}, {v(r)} row_ror:{n} row_mask:0xf bank_mask:0xf")
            for op in ("v_permlane16_swap_b32", "v_permlane32_swap_b32"):
                A(f"v_mov_b32 {v(t)}, {v(r)}")
                A(f"{op} {v(r)}, {v(t)}")
                A(f"v_add_f32 {v(r)}, {v(r)}, {v(t)}")
        A("v_add_f32 v52, v44, v45")
        for i in range(2, 8): A(f"v_add_f32 v52, v52, {v(44+i)}")
        wsum(52, 53)
        A("v_mul_f32 v52, 0x3b000000, v52")
        A("v_sub_f32 v54, v44, v52")
        A("v_mul_f32 v55, v54, v54")
        for i in range(1, 8):
            A(f"v_sub_f32 v54, {v(44+i)}, v52")
            A("v_fmac_f32 v55, v54, v54")
        wsum(55, 53)
        A("v_mul_f32 v55, 0x3b000000, v55")
        def rnd(r):
            A(f"v_cvt_pk_bf16_f32 {v(r)}, {v(r)}, {v(r)}")
            A(f"v_lshlrev_b32 {v(r)}, 16, {v(r)}")
        rnd(52); rnd(55)
        A("v_add_f32 v55, 0x3727c5ac, v55")
        rnd(55)
        A("v_sqrt_f32 v55, v55")
        rnd(55)
        A("v_rcp_f32 v55, v55")
        for i in range(4):
            A(f"v_sub_f32 {v(44+2*i)}, {v(44+2*i)}, v52")
            A(f"v_sub_f32 {v(45+2*i)}, {v(45+2*i)}, v52")
            A(f"v_cvt_pk_bf16_f32 {v(40+i)}, {v(44+2*i)}, {v(45+2*i)}")
            A(f"v_lshlrev_b32 {v(44+2*i)}, 16, {v(40+i)}")
            A(f"v_and_b32 {v(45+2*i)}, {s(sD)}, {v(40+i)}")
            A(f"v_mul_f32 {v(44+2*i)}, {v(44+2*i)}, v55")
            A(f"v_mul_f32 {v(45+2*i)}, {v(45+2*i)}, v55")
            A(f"v_cvt_pk_bf16_f32 {v(40+i)}, {v(44+2*i)}, {v(45+2*i)}")
        A(f"s_lshl_b32 {s(sA)}, {s(sSEG)}, 15")
        A(f"s_add_u32 {s(sA)}, {s(sA)}, {s(sC)}")
        A(f"buffer_store_dwordx4 v[40:43], v36, {s(SWS,4)}, {s(sA)} offen")
        A(f"s_add_u32 {s(sIT)}, {s(sIT)}, 4")
        A(f"s_cmp_lt_u32 {s(sIT)}, {s(sNS)}")
        A("s_cbranch_scc1 L_wk_ln")
    def signal(word_soff, val):
        l = A.newlabel("sig")
        A(f"s_cmp_lg_u32 {W}, 0")
        A(f"s_cbranch_scc1 {l}")
        A(f"v_mov_b32 v13, {val}")
        A("s_mov_b64 exec, 1")
        A(f"buffer_atomic_add v13, off, {s(SDBG,4)}, {word_soff} sc1")
        A("s_mov_b64 exec, -1")
        A.label(l)
    def first(A):
        signal(f"{s(G.sDB)} offset:{G.DBG_INIT*4}", 1)
    def wait_ctr(name, soff, word):
        A.label(name)
        A(f"buffer_load_dword v13, off, {s(SDBG,4)}, {soff} offset:{word*4} sc1")
        A("s_waitcnt vmcnt(0)")
        A("v_cmp_le_u32 vcc, 32, v13")
        A(f"s_cbranch_vccnz {name}ok")
        A("s_sleep 2")
        G.poll_budget(A, name, name + "ok")
        A.label(name + "ok")

    chunks = proj_chunks(SWK, 0) + proj_chunks(SWV, 2)
    chunks[4]['first'] = first
    if G.PRE >= 2:
        A(f"s_cmp_lt_u32 {s(sREP)}, {G.NEARLY}")
        A("s_cbranch_scc1 L_wk_nopre")
        nlate = (7 - G.NEARLY) * 128
        per = -(-4096 // nlate)
        A(f"s_sub_u32 {s(sA)}, {s(sREP)}, {G.NEARLY}")
        A(f"s_lshl_b32 {s(sA)}, {s(sA)}, 5")
        A(f"s_add_u32 {s(sA)}, {s(sA)}, {H}")
        A(f"s_lshl_b32 {s(sA)}, {s(sA)}, 2")
        A(f"s_add_u32 {s(sA)}, {s(sA)}, {W}")
        A(f"s_mul_i32 {s(sA)}, {s(sA)}, {per*1024}")
        for sr in ((SWK, SWV, SWQ, SWO) if G.PRE == 2 else (SWV, SWQ, SWO) if G.PRE == 3 else (SWQ, SWO)):
            for i in range(per):
                if i % 4 == 0: A(f"s_add_u32 {s(sB)}, {s(sA)}, {i*1024}")
                A(f"buffer_load_dwordx4 v[72:75], {v(vL16)}, {s(sr,4)}, {s(sB)} offen offset:{(i%4)*1024}")
            if G.PRE >= 3: A("s_waitcnt vmcnt(0)")
        A.label("L_wk_nopre")
    for i in range(3):
        A(f"s_add_u32 {s(sA)}, {W}, {4*i}")
        A(f"s_mul_i32 {s(sA)}, {s(sA)}, 6")
        A(f"s_min_u32 {s(sA)}, {s(sA)}, 60")
        A(f"s_lshr_b64 {s(sCUR,2)}, {s(sLST,2)}, {s(sA)}")
        A(f"s_and_b32 {s(sA)}, {s(sCUR)}, 63")
        A(f"s_lshl_b32 {s(sA)}, {s(sA)}, 5")
        A(f"s_add_u32 {s(sA)}, {s(sA)}, {H}")
        A(f"s_lshl_b32 {s(sA)}, {s(sA)}, 10")
        A(f"buffer_load_dwordx4 {v(60+4*i,4)}, {v(vL16)}, {s(SX,4)}, {s(sA)} offen")
    A(f"s_lshl_b32 {s(sT0)}, {W}, 10")
    G.run_loader(A, chunks, after_prime=init_work, throttle=sTHR)
    wst(1)
    wait_ctr("L_wk_iw", s(G.sDB), G.DBG_INIT)
    wait_ctr("L_wk_tw", "0", G.DBG_INIT)

    ACC, XF = 32, 64
    def xt_dma(segreg):
        A(f"s_lshl_b32 {s(sA)}, {segreg}, 15")
        A(f"s_lshl_b32 {s(sB)}, {W}, 13")
        A(f"s_add_u32 {s(sA)}, {s(sA)}, {s(sB)}")
        A(f"s_add_u32 {s(sB)}, {s(sB)}, {s(sBUF)}")
        for h2 in range(2):
            A(f"s_add_u32 m0, {s(sB)}, {h2*4096}")
            A(f"s_add_u32 {s(sC)}, {s(sA)}, {h2*4096}")
            for i in range(4):
                A(f"buffer_load_dwordx4 {v(vL16)}, {s(SWS,4)}, {s(sC)} offen offset:{i*1024} sc1 lds")
    def proj_pass(name, swap, epilogue, flag):
        A(f"s_mov_b32 {s(sBUF)}, {L_XT}")
        A(f"s_and_b32 {s(sD)}, {s(sLST)}, 63")
        xt_dma(s(sD))
        def body():
            A("s_waitcnt vmcnt(0)")
            A("s_barrier")
            if flag: flag_prev()
            if flag: wst_seg(1)
            A(f"v_add_u32 v14, {s(sBUF)}, {v(vL16)}")
            A(f"s_xor_b32 {s(sBUF)}, {s(sBUF)}, {L_XT ^ (L_XT + 32768)}")
            rd = lambda ks, rt: f"ds_read_b128 {v(XF + ((ks % 4)*2 + rt)*4, 4)}, v14 offset:{rt*16384 + ks*1024}"
            for ks in range(3):
                A(rd(ks, 0)); A(rd(ks, 1))
            A(f"s_and_b32 {s(sD)}, {s(sCUR)}, 63")
            xt_dma(s(sD))
            for ks in range(16):
                A(lg(4 if ks < 14 else (2 if ks == 14 else 0)))
                n = 0
                for rt in range(2):
                    for t in range(4):
                        d = v(ACC + (rt*4 + t)*4, 4)
                        wop, xop = a((t*16 + ks)*4, 4), v(XF + ((ks % 4)*2 + rt)*4, 4)
                        if t in swap: mf(d, xop, wop, "0" if ks == 0 else d)
                        else: mf(d, wop, xop, "0" if ks == 0 else d)
                        if n < 2 and ks + 3 < 16: A(rd(ks + 3, n))
                        n += 1
            epilogue()
        seg_loop(name, body)
        A("s_waitcnt vmcnt(0)")
        A("s_barrier")
        if flag: flag_prev()
    def flag_prev():
        l = A.newlabel("nf")
        A(f"s_cmp_eq_u32 {s(sIT)}, 0")
        A(f"s_cbranch_scc1 {l}")
        A(f"s_cmp_lg_u32 {W}, 0")
        A(f"s_cbranch_scc1 {l}")
        A(f"s_lshl_b32 {s(sA)}, {s(sPRV)}, 2")
        A(f"s_lshl_b32 {s(sB)}, {H}, 8")
        A(f"s_add_u32 {s(sA)}, {s(sA)}, {s(sB)}")
        A(f"s_add_u32 {s(sA)}, {s(sA)}, {G.WS_FLG}")
        A("v_mov_b32 v13, 1")
        A("s_mov_b64 exec, 1")
        A(f"buffer_store_dword v13, off, {s(SWS,4)}, {s(sA)} sc1")
        A("s_mov_b64 exec, -1")
        A.label(l)
    def pack8(dst, x, y):
        A(f"v_cvt_pk_bf16_f32 {v(dst)}, {v(x)}, {v(x+1)}")
        A(f"v_cvt_pk_bf16_f32 {v(dst+1)}, {v(x+2)}, {v(x+3)}")
        A(f"v_cvt_pk_bf16_f32 {v(dst+2)}, {v(y)}, {v(y+1)}")
        A(f"v_cvt_pk_bf16_f32 {v(dst+3)}, {v(y+2)}, {v(y+3)}")
    acc = lambda rt, t: ACC + (rt*4 + t)*4
    def seghead(dst, shift, base):
        A(f"s_lshl_b32 {s(dst)}, {s(sSEG)}, 5")
        A(f"s_add_u32 {s(dst)}, {s(dst)}, {H}")
        A(f"s_lshl_b32 {s(dst)}, {s(dst)}, {shift}")
        A(f"s_add_u32 {s(dst)}, {s(dst)}, {base}")
    def epi1():
        seghead(sA, 14, G.WS_KVX)
        A(f"s_lshl_b32 {s(sB)}, {W}, 10")
        A(f"s_add_u32 {s(sB)}, {s(sB)}, {s(sA)}")
        A(f"s_add_u32 {s(sC)}, {s(sB)}, 4096")
        A(f"s_lshl_b32 {s(sD)}, {W}, 11")
        A(f"s_add_u32 {s(sD)}, {s(sD)}, {s(sA)}")
        A(f"s_add_u32 {s(sD)}, {s(sD)}, 8192")
        pack8(96, acc(0,0), acc(0,1))
        A(f"buffer_store_dwordx4 v[96:99], {v(vL16)}, {s(SWS,4)}, {s(sB)} offen sc1")
        pack8(100, acc(1,0), acc(1,1))
        A(f"buffer_store_dwordx4 v[100:103], {v(vL16)}, {s(SWS,4)}, {s(sC)} offen sc1")
        pack8(104, acc(0,2), acc(1,2))
        A(f"buffer_store_dwordx4 v[104:107], {v(vL16)}, {s(SWS,4)}, {s(sD)} offen sc1")
        pack8(108, acc(0,3), acc(1,3))
        A(f"buffer_store_dwordx4 v[108:111], {v(vL16)}, {s(SWS,4)}, {s(sD)} offen offset:1024 sc1")
        seghead(sA, 12, G.WS_KVM)
        A(f"s_lshl_b32 {s(sB)}, {W}, 10")
        A(f"s_add_u32 {s(sB)}, {s(sB)}, {s(sA)}")
        A(f"buffer_store_dwordx4 v[16:19], {v(vL16)}, {s(SWS,4)}, {s(sB)} offen sc1")
    for i in range(4): A(f"v_mov_b32 {v(16+i)}, {SENT}")
    proj_pass("L_wk_p1", (2, 3), epi1, True)
    A(f"s_lshl_b32 {s(sA)}, {H}, 15")
    A(f"s_add_u32 {s(sA)}, {s(sA)}, {s(sRSB)}")
    for sl in range(2):
        for i in range(8):
            A(f"s_add_u32 {s(sB)}, {s(sA)}, {sl*0x100000 + i*4096}")
            A(f"buffer_store_dwordx4 v[16:19], v12, {s(SWS,4)}, {s(sB)} offen")

    wst(2)
    chunks = proj_chunks(SWQ, 0)
    chunks[0]['first'] = lambda A: signal(f"{s(G.sDB)} offset:{G.DBG_RS*4}", 1)
    for b in range(2):
        for hb in range(2):
            for q in range(2):
                reads = []
                for p in range(4):
                    for m in range(2):
                        dst = a(((2 + m) * 16 + 4*p + 2*b + hb) * 4 + 2*q, 2)
                        reads.append(lambda R, dst=dst, p=p, m=m: f"ds_read_b64_tr_b16 {dst}, v11 offset:{R + p*1024 + 2*m*ISTR}")
                chunks.append(dict(srd=[SWG, SWG, SWU, SWU], voff=10,
                                   soff=[(64*b + 32*hb + 4*q + 2*(u & 1)) * 2752 for u in range(4)], reads=reads))
    A(f"s_lshl_b32 {s(sT0)}, {W}, 10")
    G.run_loader(A, chunks)
    wst(3)
    A(f"s_lshl_b32 {s(sA)}, {H}, 2")
    A(f"s_add_u32 {s(sA)}, {s(sA)}, {W}")
    A(f"s_cmp_lt_u32 {s(sA)}, 86")
    A(f"s_cselect_b32 {s(sHM)}, -1, 0")
    def epi2():
        seghead(sA, 13, G.WS_QX)
        A(f"s_lshl_b32 {s(sB)}, {W}, 10")
        A(f"s_add_u32 {s(sB)}, {s(sB)}, {s(sA)}")
        A(f"s_add_u32 {s(sC)}, {s(sB)}, 4096")
        pack8(96, acc(0,0), acc(0,1))
        A(f"buffer_store_dwordx4 v[96:99], {v(vL16)}, {s(SWS,4)}, {s(sB)} offen")
        pack8(100, acc(1,0), acc(1,1))
        A(f"buffer_store_dwordx4 v[100:103], {v(vL16)}, {s(SWS,4)}, {s(sC)} offen")
        seghead(sA, 12, G.WS_HX)
        A(f"s_lshr_b32 {s(sB)}, {W}, 1")
        A(f"s_lshl_b32 {s(sB)}, {s(sB)}, 10")
        A(f"s_and_b32 {s(sC)}, {W}, 1")
        A(f"s_lshl_b32 {s(sC)}, {s(sC)}, 3")
        A(f"s_add_u32 {s(sB)}, {s(sB)}, {s(sC)}")
        A(f"s_add_u32 {s(sB)}, {s(sB)}, {s(sA)}")
        A(f"s_mov_b32 {s(sD)}, 0xffff0000")
        A(f"s_mov_b32 {s(sE)}, 0x3d372713")
        A(f"s_mov_b32 {s(sF)}, 0xc0135761")
        def rnd2(x):
            A(f"v_cvt_pk_bf16_f32 v112, {v(x)}, {v(x+1)}")
            A(f"v_lshlrev_b32 {v(x)}, 16, v112")
            A(f"v_and_b32 {v(x+1)}, {s(sD)}, v112")
        for rt in range(2):
            gt, up = acc(rt, 2), acc(rt, 3)
            for h2 in (0, 2): rnd2(gt + h2); rnd2(up + h2)
            for r in range(4):
                A(f"v_mul_f32 {v(113+r)}, {v(gt+r)}, {v(gt+r)}")
                A(f"v_fma_f32 {v(113+r)}, {v(113+r)}, {s(sE)}, 1.0")
                A(f"v_mul_f32 {v(113+r)}, {v(113+r)}, {v(gt+r)}")
                A(f"v_mul_f32 {v(113+r)}, {s(sF)}, {v(113+r)}")
                A(f"v_exp_f32 {v(113+r)}, {v(113+r)}")
            for r in range(4):
                A(f"v_add_f32 {v(113+r)}, 1.0, {v(113+r)}")
                A(f"v_rcp_f32 {v(113+r)}, {v(113+r)}")
            for r in range(4): A(f"v_mul_f32 {v(gt+r)}, {v(gt+r)}, {v(113+r)}")
            for h2 in (0, 2): rnd2(gt + h2)
            for r in range(4): A(f"v_mul_f32 {v(gt+r)}, {v(gt+r)}, {v(up+r)}")
            d = 104 + 2*rt
            A(f"v_cvt_pk_bf16_f32 {v(d)}, {v(gt)}, {v(gt+1)}")
            A(f"v_cvt_pk_bf16_f32 {v(d+1)}, {v(gt+2)}, {v(gt+3)}")
            A(f"v_and_b32 {v(d)}, {s(sHM)}, {v(d)}")
            A(f"v_and_b32 {v(d+1)}, {s(sHM)}, {v(d+1)}")
            A(f"buffer_store_dwordx2 {v(d,2)}, {v(vL16)}, {s(SWS,4)}, {s(sB)} offen offset:{rt*2048}")
    proj_pass("L_wk_p2", (), epi2, False)

    wst(4)
    chunks = []
    A(f"s_lshl_b32 {s(sE)}, {H}, 17")
    A(f"s_lshl_b32 {s(sF)}, {H}, 16")
    for ks in range(6):
        for q in range(2):
            reads = [lambda R, ct=ct, ks=ks, q=q: f"ds_read_b64_tr_b16 {a((ks*8+ct)*4 + 2*q, 2)}, v9 offset:{R + ct*32}" for ct in range(8)]
            k2 = ks if ks < 4 else ks - 4
            chunks.append(dict(srd=SWO if ks < 4 else SWD, voff=8, sbase=sE if ks < 4 else sF,
                               soff=[(32*k2 + 16*q + rr) * 1024 for rr in range(4)], reads=reads))
    A(f"s_lshl_b32 {s(sT0)}, {W}, 10")
    G.run_loader(A, chunks)

    wst(5)
    KX, QF, VX, HF, KM, VMR, VMO = 16, 48, 64, 80, 96, 112, 116
    T0, T1, T2, PM, ONE, OT, LL, MASK, SEL, M, M2, M3 = 132, 136, 140, 144, 148, 152, 168, 172, 180, 184, 185, 186
    XR, RES, OAC, OF, GG = 188, 168, 192, 16, 48
    wait_ctr("L_wk_rw", s(G.sDB), G.DBG_RS)
    A(f"s_and_b32 {s(sA)}, {W}, 1")
    A(f"s_lshl_b32 {s(sA)}, {s(sA)}, 4")
    A(f"v_add_u32 v14, {s(sA)}, {v(vR16)}")
    A(f"v_lshlrev_b32 v15, 2, {v(vG)}")
    A("v_mov_b32 v13, 0xf149f2ca")
    for i in range(8):
        A(f"v_add_u32 {v(M)}, {16*(i>>2) + (i&3)}, v15")
        A(f"v_cmp_gt_u32 vcc, {v(M)}, v14")
        A(f"v_cndmask_b32 {v(MASK+i)}, 0, v13, vcc")
    for i in range(4): A(f"v_mov_b32 {v(ONE+i)}, 0x3f803f80")
    for i in range(1, 4): A(f"v_mov_b32 {v(PM+i)}, 0")
    for e in range(4):
        for i in range(1, 4): A(f"v_mov_b32 {v(VMO+4*e+i)}, 0")
    A("v_and_b32 v13, 1, v0")
    A("v_cmp_eq_u32 vcc, 0, v13")
    A("v_mov_b32 v14, 0x3f80")
    A("v_mov_b32 v15, 0x3f800000")
    A("v_cndmask_b32 v14, v15, v14, vcc")
    A(f"v_lshrrev_b32 v13, 1, {v(vR16)}")
    for r in range(4):
        A(f"v_cmp_eq_u32 vcc, {r}, v13")
        A(f"v_cndmask_b32 {v(SEL+r)}, 0, v14, vcc")
    A("v_and_b32 v13, 3, v0")
    A("v_bfe_u32 v14, v0, 2, 1")
    A("v_lshl_add_u32 v13, v14, 4, v13")
    A("v_lshlrev_b32 v13, 10, v13")
    A(f"v_lshl_add_u32 v13, {v(vG)}, 3, v13")
    A(f"s_lshl_b32 {s(sA)}, {W}, 12")
    A(f"s_lshl_b32 {s(sB)}, {H}, 5")
    A(f"s_add_u32 {s(sA)}, {s(sA)}, {s(sB)}")
    A(f"v_add_u32 v13, {s(sA)}, v13")
    A(f"v_cmp_gt_u32 vcc, 8, {v(vR16)}")
    A("v_mov_b32 v14, 0x7ffffff0")
    A("v_cndmask_b32 v6, v14, v13, vcc")
    A(f"s_and_b32 {s(sA)}, {W}, 1")
    A(f"s_lshl_b32 {s(sA)}, {s(sA)}, 12")
    A(f"s_lshr_b32 {s(sB)}, {W}, 1")
    A(f"s_lshl_b32 {s(sB)}, {s(sB)}, 11")
    A(f"s_add_u32 {s(sA)}, {s(sA)}, {s(sB)}")
    A(f"v_add_u32 v7, {s(sA)}, {v(vL16)}")
    A(f"s_lshl_b32 {s(sA)}, {W}, 13")
    A(f"s_add_u32 {s(sA)}, {s(sA)}, 16384")
    A(f"v_mul_u32_u24 v13, 1088, {v(vG)}")
    A(f"v_lshl_add_u32 v13, {v(vR16)}, 3, v13")
    A(f"v_add_u32 v8, {s(sA)}, v13")
    A("v_and_b32 v13, 3, v0")
    A("v_mul_u32_u24 v13, 1088, v13")
    A("v_lshrrev_b32 v14, 2, v0")
    A("v_lshl_add_u32 v13, v14, 3, v13")
    A(f"v_add_u32 v9, {s(sA)}, v13")
    for ct in range(8):
        A(f"s_xor_b32 {s(sA)}, {H}, {ct}")
        A(f"s_lshl_b32 {s(sA)}, {s(sA)}, 10")
        A(f"s_lshl_b32 {s(sB)}, {W}, 18")
        A(f"s_add_u32 {s(sA)}, {s(sA)}, {s(sB)}")
        A(f"s_add_u32 {s(sRO+ct)}, {s(sA)}, {ct*32768}")
    A(f"s_mov_b32 {s(sCS)}, 0x3e0293ee")
    A(f"s_mov_b32 {s(sCS+1)}, 0x3e0293ee")
    def attn():
        ld = lambda d, so, off: A(f"buffer_load_dwordx4 {v(d,4)}, {v(vL16)}, {s(SWS,4)}, {s(so)} offen offset:{off} sc1")
        seghead(sA, 12, G.WS_HX)
        for i in range(4): ld(HF + 4*i, sA, i*1024)
        seghead(sA, 13, G.WS_QX)
        A(f"s_and_b32 {s(sB)}, {W}, 1")
        A(f"s_lshl_b32 {s(sB)}, {s(sB)}, 12")
        A(f"s_add_u32 {s(sA)}, {s(sA)}, {s(sB)}")
        for i in range(4): ld(QF + 4*i, sA, i*1024)
        seghead(sA, 14, G.WS_KVX)
        for i in range(4): ld(KX + 4*i, sA, i*1024)
        A(f"s_add_u32 {s(sB)}, {s(sA)}, 4096")
        for i in range(4): ld(KX + 16 + 4*i, sB, i*1024)
        A(f"s_lshr_b32 {s(sB)}, {W}, 1")
        A(f"s_lshl_b32 {s(sB)}, {s(sB)}, 12")
        A(f"s_add_u32 {s(sB)}, {s(sB)}, {s(sA)}")
        A(f"s_add_u32 {s(sB)}, {s(sB)}, 8192")
        for i in range(4): ld(VX + 4*i, sB, i*1024)
        A(f"s_lshl_b32 {s(sD)}, {s(sSEG)}, 15")
        A(f"buffer_load_dwordx2 {v(XR,2)}, v6, {s(SX,4)}, {s(sD)} offen")
        oac = lambda rt, ct: v(OAC + (ct*2 + rt)*4, 4)
        A("s_waitcnt vmcnt(17)")
        for k2 in range(2):
            for ct in range(8):
                for rt in range(2):
                    mf(oac(rt, ct), v(HF + (rt*2 + k2)*4, 4), a(((4 + k2)*8 + ct)*4, 4), "0" if k2 == 0 else oac(rt, ct))
        A("s_waitcnt vmcnt(5)")
        for ks in range(4):
            mf(v(T0,4), v(KX + 4*ks, 4), v(QF + 4*ks, 4), v(MASK,4) if ks == 0 else v(T0,4))
        for ks in range(4):
            mf(v(T1,4), v(KX + 16 + 4*ks, 4), v(QF + 4*ks, 4), v(MASK+4,4) if ks == 0 else v(T1,4))
        if G.WB:
            A(f"s_add_u32 {s(sA)}, {s(sIT)}, 1")
            A(f"s_sub_u32 {s(sA)}, {s(sNS)}, {s(sA)}")
            A(f"s_or_b32 {s(sA)}, {s(sA)}, {H}")
            A(f"s_or_b32 {s(sA)}, {s(sA)}, {W}")
            A("s_cbranch_scc1 L_wk_nowb")
            A("buffer_wbl2 sc1")
            A.label("L_wk_nowb")
        seghead(sA, 12, G.WS_KVM)
        A.label("L_wk_km")
        for i in range(4): ld(KM + 4*i, sA, i*1024)
        A("s_waitcnt vmcnt(0)")
        A(f"v_max_u32 {v(M)}, {v(KM)}, {v(KM+1)}")
        for i in range(2, 16, 2): A(f"v_max3_u32 {v(M)}, {v(M)}, {v(KM+i)}, {v(KM+i+1)}")
        A(f"v_cmp_eq_u32 vcc, {SENT}, {v(M)}")
        A("s_cbranch_vccz L_wk_kmok")
        A(f"s_sleep {G.KSLP}")
        G.poll_budget(A, "L_wk_km", "L_wk_kmok")
        A.label("L_wk_kmok")
        wst_seg(2)
        for i in range(4):
            for t2 in range(2):
                A(f"ds_write_b32 v8, {v(KM+4*i+t2)} offset:{(32*i+16*t2)*8}")
        A(f"s_cmp_ge_u32 {W}, 2")
        A("s_cselect_b64 vcc, -1, 0")
        for e in range(4):
            A(f"v_cndmask_b32 {v(VMO+4*e)}, {v(KM+4*(e>>1)+2+(e&1))}, {v(KM+8+4*(e>>1)+2+(e&1))}, vcc")
        A(lg(0))
        for ks in range(4):
            for q in range(2):
                A(f"ds_read_b64_tr_b16 {v(KM+4*ks+2*q,2)}, v9 offset:{(32*ks+16*q)*8}")
        for ks in range(4):
            A(lg(6 - 2*ks))
            mf(v(T2,4), v(KM + 4*ks, 4), v(QF + 4*ks, 4), "0" if ks == 0 else v(T2,4))
        A(f"v_max3_f32 {v(M)}, {v(T0)}, {v(T0+1)}, {v(T0+2)}")
        A(f"v_max3_f32 {v(M)}, {v(M)}, {v(T0+3)}, {v(T1)}")
        A(f"v_max3_f32 {v(M)}, {v(M)}, {v(T1+1)}, {v(T1+2)}")
        A(f"v_max_f32 {v(M)}, {v(M)}, {v(T1+3)}")
        A(f"v_max3_f32 {v(M2)}, {v(M)}, {v(T2)}, {v(T2+1)}")
        A(f"v_max3_f32 {v(M)}, {v(M)}, {v(T2)}, {v(T2+1)}")
        A(f"v_permlane32_swap_b32 {v(M)}, {v(M2)}")
        A(f"v_max_f32 {v(M3)}, {v(M)}, {v(M2)}")
        A(f"v_max_f32 {v(M)}, {v(M)}, {v(M2)}")
        A(f"v_permlane16_swap_b32 {v(M)}, {v(M3)}")
        A(f"v_max_f32 {v(M)}, {v(M)}, {v(M3)}")
        A(f"v_mul_f32 {v(M)}, {s(sCS)}, {v(M)}")
        for r in range(T0, T0 + 10, 2):
            A(f"v_pk_fma_f32 {v(r,2)}, {v(r,2)}, {s(sCS,2)}, {v(M,2)} op_sel_hi:[1,1,0] neg_lo:[0,0,1] neg_hi:[0,0,1]")
        for r in range(T0, T0 + 10): A(f"v_exp_f32 {v(r)}, {v(r)}")
        for i in range(4): A(f"v_cvt_pk_bf16_f32 {v(T0+i)}, {v(T0+2*i)}, {v(T0+2*i+1)}")
        A(f"v_cvt_pk_bf16_f32 {v(PM)}, {v(T2)}, {v(T2+1)}")
        mf(v(LL,4), v(ONE,4), v(T0,4), "0")
        mf(v(LL,4), v(ONE,4), v(PM,4), v(LL,4))
        for e in range(4):
            mf(v(OT+4*e,4), v(VX+4*e,4), v(T0,4), "0")
            mf(v(OT+4*e,4), v(VMO+4*e,4), v(PM,4), v(OT+4*e,4))
        A(f"v_rcp_f32 {v(M)}, {v(LL)}")
        for r in range(OT, OT + 16): A(f"v_mul_f32 {v(r)}, {v(r)}, {v(M)}")
        pack8(OT, OT, OT + 4)
        pack8(OT + 4, OT + 8, OT + 12)
        A(f"ds_write_b128 v7, {v(OT,4)} offset:{L_OI}")
        A(f"ds_write_b128 v7, {v(OT+4,4)} offset:{L_OI+1024}")
        A(lg(0))
        A("s_barrier")
        for i in range(8): A(f"ds_read_b128 {v(OF+4*i,4)}, {v(vL16)} offset:{L_OI + i*1024}")
        A(f"v_add_u32 v13, {s(sRSB)}, {v(vL16)}")
        A(lg(0))
        A("s_barrier")
        def fin(ct):
            x = OAC + ct*8
            pack8(x, x, x + 4)
            A(f"buffer_store_dwordx4 {v(x,4)}, v13, {s(SWS,4)}, {s(sRO+ct)} offen")
        for ct in range(8):
            for ks in range(4):
                for rt in range(2):
                    mf(oac(rt, ct), v(OF + (rt*4 + ks)*4, 4), a((ks*8 + ct)*4, 4), oac(rt, ct))
            if ct: fin(ct - 1)
        fin(7)
        A(f"s_lshl_b32 {s(sA)}, {H}, 15")
        A(f"s_add_u32 {s(sA)}, {s(sA)}, {s(sRSB)}")
        A.label("L_wk_rs")
        for i in range(8):
            A(f"s_add_u32 {s(sB)}, {s(sA)}, {i*4096}")
            A(f"buffer_load_dwordx4 {v(GG+4*i,4)}, v12, {s(SWS,4)}, {s(sB)} offen sc1")
        A("s_waitcnt vmcnt(0)")
        for i in range(8):
            mf(v(RES,4), v(GG+4*i,4), v(SEL,4), "0" if i == 0 else v(RES,4))
            if i == 0: A(f"v_max_u32 {v(M)}, {v(GG)}, {v(GG+1)}")
            else: A(f"v_max3_u32 {v(M)}, {v(M)}, {v(GG+4*i)}, {v(GG+4*i+1)}")
            A(f"v_max3_u32 {v(M)}, {v(M)}, {v(GG+4*i+2)}, {v(GG+4*i+3)}")
        A(f"v_cmp_eq_u32 vcc, {SENT}, {v(M)}")
        A("s_cbranch_vccz L_wk_rsok")
        A("s_sleep 1")
        G.poll_budget(A, "L_wk_rs", "L_wk_rsok")
        A.label("L_wk_rsok")
        A(f"s_mov_b32 {s(sC)}, 0xffff0000")
        A(f"v_lshlrev_b32 {v(M)}, 16, {v(XR)}")
        A(f"v_and_b32 {v(M2)}, {s(sC)}, {v(XR)}")
        A(f"v_lshlrev_b32 {v(M3)}, 16, {v(XR+1)}")
        A(f"v_and_b32 {v(XR+1)}, {s(sC)}, {v(XR+1)}")
        A("s_nop 3")
        A(f"v_add_f32 {v(RES)}, {v(RES)}, {v(M)}")
        A(f"v_add_f32 {v(RES+1)}, {v(RES+1)}, {v(M2)}")
        A(f"v_add_f32 {v(RES+2)}, {v(RES+2)}, {v(M3)}")
        A(f"v_add_f32 {v(RES+3)}, {v(RES+3)}, {v(XR+1)}")
        A(f"v_cvt_pk_bf16_f32 {v(RES)}, {v(RES)}, {v(RES+1)}")
        A(f"v_cvt_pk_bf16_f32 {v(RES+1)}, {v(RES+2)}, {v(RES+3)}")
        A(f"buffer_store_dwordx2 {v(RES,2)}, v6, {s(SOUT,4)}, {s(sD)} offen")
        wst_seg(3)
        A(f"s_add_u32 {s(sB)}, {s(sIT)}, 2")
        A(f"s_cmp_ge_u32 {s(sB)}, {s(sNS)}")
        A("s_cbranch_scc1 L_wk_norst")
        for i in range(4): A(f"v_mov_b32 {v(GG+i)}, {SENT}")
        for i in range(8):
            A(f"s_add_u32 {s(sB)}, {s(sA)}, {i*4096}")
            A(f"buffer_store_dwordx4 {v(GG,4)}, v12, {s(SWS,4)}, {s(sB)} offen")
        A.label("L_wk_norst")
        A(f"s_xor_b32 {s(sRSB)}, {s(sRSB)}, 0x100000")
    seg_loop("L_wk_at", attn)
    A("s_waitcnt vmcnt(0)")
    A("s_endpgm")
```
